```python
import torch

def _softmax(x, axis=-1):
    return torch.softmax(x, dim=axis)
def _gelu(x):
    return torch.nn.functional.gelu(x, approximate="tanh")
def _silu(x):
    return torch.nn.functional.silu(x)
def _sigmoid(x):
    return torch.sigmoid(x)
def _layernorm(x, axis=-1, eps=1e-5):
    m = x.mean(dim=axis, keepdim=True)
    v = x.var(dim=axis, keepdim=True, unbiased=False)
    return (x - m) / torch.sqrt(v + eps)
def _scatter_add(tgt, idx, src, axis=0):
    return tgt.clone().index_add_(axis, idx, src)
def _segment_sum(src, seg, n):
    out = torch.zeros((n,) + src.shape[1:], dtype=src.dtype)
    return out.index_add_(0, seg, src)
def _pad(x, pw):
    flat = tuple(v for pair in reversed(pw) for v in pair)
    return torch.nn.functional.pad(x, flat)

kernel_name = 'sequential_preLN__ssm_conv_s4__geglu_ffn__prompt'

def setup_inputs():

    _w = (lambda a: (lambda t: t.to(torch.bfloat16) if t.is_floating_point() else t)(torch.as_tensor(a)))
    def _A_setup():
        B, L, D, N = 1, 2048, 448, 256
        A_re = -(lambda _x: torch.exp(torch.as_tensor(_x)))((lambda *s: torch.randn(*s, dtype=torch.bfloat16) * 3.2)(D, N))
        A_im = torch.pi * (lambda *s: torch.randn(*s, dtype=torch.bfloat16) * 0.05)(D, N)
        B_re = (lambda *s: torch.randn(*s, dtype=torch.bfloat16) * 0.05)(D, N)
        B_im = (lambda *s: torch.randn(*s, dtype=torch.bfloat16) * 0.05)(D, N)
        C_re = (lambda *s: torch.randn(*s, dtype=torch.bfloat16) * 0.05)(D, N)
        C_im = (lambda *s: torch.randn(*s, dtype=torch.bfloat16) * 0.05)(D, N)
        log_dt = (lambda *s: torch.randn(*s, dtype=torch.bfloat16) * 0.05)(D) * 0.5 - 4.0
        Dskip = (lambda *s: torch.randn(*s, dtype=torch.bfloat16) * 0.05)(D)
        return {
            "u": _w((lambda *s: torch.randn(*s, dtype=torch.bfloat16) * 0.05)(B, L, D)),
            "A_re": _w(A_re),
            "A_im": _w(A_im),
            "B_re": _w(B_re),
            "B_im": _w(B_im),
            "C_re": _w(C_re),
            "C_im": _w(C_im),
            "log_dt": _w(log_dt),
            "Dskip": _w(Dskip),
        }
    _A_in = _A_setup()

    def _B_setup():
        B, S, D, F = 1, 2048, 448, 1792
        return {
            "x": _w((lambda *s: torch.randn(*s, dtype=torch.bfloat16) * 0.05)(B, S, D)),
            "w_gate": _w((lambda *s: torch.randn(*s, dtype=torch.bfloat16) * 0.05)(D, F)),
            "w_up": _w((lambda *s: torch.randn(*s, dtype=torch.bfloat16) * 0.05)(D, F)),
            "w_down": _w((lambda *s: torch.randn(*s, dtype=torch.bfloat16) * 0.05)(F, D)),
        }
    _B_in = _B_setup()

    return {
        "A_u": _A_in["u"],
        "A_A_re": _A_in["A_re"],
        "A_A_im": _A_in["A_im"],
        "A_B_re": _A_in["B_re"],
        "A_B_im": _A_in["B_im"],
        "A_C_re": _A_in["C_re"],
        "A_C_im": _A_in["C_im"],
        "A_log_dt": _A_in["log_dt"],
        "A_Dskip": _A_in["Dskip"],
        "B_x": _B_in["x"],
        "B_w_gate": _B_in["w_gate"],
        "B_w_up": _B_in["w_up"],
        "B_w_down": _B_in["w_down"],
    }

def reference(A_u, A_A_re, A_A_im, A_B_re, A_B_im, A_C_re, A_C_im, A_log_dt, A_Dskip, B_x, B_w_gate, B_w_up, B_w_down):
    def _A_ref(u, A_re, A_im, B_re, B_im, C_re, C_im, log_dt, Dskip):
        Bsz, L, D = u.shape
        dt = torch.exp(log_dt)[:, None]
        A = A_re + 1j * A_im
        Bc = B_re + 1j * B_im
        Cc = C_re + 1j * C_im
        logdA = dt * A
        dB = dt * Bc
        l = (lambda x, dt: x.to(dt))(torch.arange(L), A_re.dtype)
        P = torch.exp(logdA[:, :, None] * l[None, None, :])
        K = torch.einsum("dn,dnl,dn->dl", Cc, P, dB).real
        L2 = 2 * L
        Kp = _pad(K, ((0, 0), (0, L)))
        up = (lambda x, *d: x.permute(*d))(u, 0, 2, 1)
        up = _pad(up, ((0, 0), (0, 0), (0, L)))
        Kf = (lambda x, axes=(-2,-1): torch.fft.rfft2(x.float(), dim=axes))(Kp[:, None, :], axes=(-2, -1))
        Uf = (lambda x, axes=(-2,-1): torch.fft.rfft2(x.float(), dim=axes))(up[:, :, None, :], axes=(-2, -1))
        Yf = Uf * Kf[None, :, :, :]
        y = (lambda x, s, axes=(-2,-1): torch.fft.irfft2(x, s=s, dim=axes).to(torch.bfloat16))(Yf, (1, L2), axes=(-2, -1))[:, :, 0, :L]
        y = (lambda x, *d: x.permute(*d))(y, 0, 2, 1) + u * Dskip[None, None, :]
        return y

    def _B_ref(x, w_gate, w_up, w_down):
        return (_gelu(x @ w_gate) * (x @ w_up)) @ w_down

    x = A_u
    h = x + _A_ref(_layernorm(x, axis=-1), A_A_re, A_A_im, A_B_re, A_B_im, A_C_re, A_C_im, A_log_dt, A_Dskip)
    h2 = h + _B_ref(_layernorm(h, axis=-1), B_w_gate, B_w_up, B_w_down)
    return h2
```

```python
NAME = "sequential_preLN__ssm_conv_s4__geglu_ffn__prompt"

UR_STRIDE = 4096
KP_STRIDE = 9216
WS_UR = 0
WS_XT = WS_UR + 448 * UR_STRIDE
WS_KP = WS_XT + 448 * 4096
WS_HT = WS_KP + 448 * KP_STRIDE
WS_CS = WS_HT + 448 * 4096
WS_ACT = WS_CS + 16384
WS_END = WS_ACT + 224 * 2048 * 16

class Asm:
    def __init__(self):
        self.lines = []
    def __call__(self, s):
        for l in s.strip("\n").split("\n"):
            self.lines.append("    " + l.strip())
    def label(self, l):
        self.lines.append(l + ":")
    def raw(self, s):
        self.lines.append(s)
    def nop(self, n):
        while n > 0:
            k = min(n, 16)
            self(f"s_nop {k-1}")
            n -= k
    def text(self):
        return "\n".join(self.lines) + "\n"

def srd(a, dst, ptr_lo, nbytes, off=0):
    if off:
        a(f"s_add_u32 s{dst}, s{ptr_lo}, {off}")
        a(f"s_addc_u32 s{dst+1}, s{ptr_lo+1}, 0")
    else:
        a(f"s_mov_b32 s{dst}, s{ptr_lo}")
        a(f"s_mov_b32 s{dst+1}, s{ptr_lo+1}")
    a(f"s_mov_b32 s{dst+2}, {nbytes}")
    a(f"s_mov_b32 s{dst+3}, 0x00020000")

def kernel_begin(a, name):
    a.raw(f".globl {name}")
    a.raw(".p2align 8")
    a.raw(f".type {name},@function")
    a.label(name)

def descriptor(name, vgpr, sgpr=102, accum=None, total=None):
    accum = accum if accum is not None else (vgpr + 3) // 4 * 4
    total = total if total is not None else vgpr
    return f""".p2align 6
.amdhsa_kernel {name}
  .amdhsa_next_free_vgpr {total}
  .amdhsa_next_free_sgpr {sgpr}
  .amdhsa_accum_offset {accum}
  .amdhsa_group_segment_fixed_size 0
  .amdhsa_kernarg_size 128
  .amdhsa_user_sgpr_count 2
  .amdhsa_user_sgpr_kernarg_segment_ptr 1
  .amdhsa_system_sgpr_workgroup_id_x 1
.end_amdhsa_kernel
"""

def cmul(a, out, z, w):
    a(f"v_pk_mul_f32 v[{out}:{out+1}], v[{z}:{z+1}], v[{w}:{w+1}] op_sel:[0,0] op_sel_hi:[1,0]")
    a(f"v_pk_fma_f32 v[{out}:{out+1}], v[{z}:{z+1}], v[{w}:{w+1}], v[{out}:{out+1}] op_sel:[1,1,0] op_sel_hi:[0,1,1] neg_lo:[1,0,0]")

import os
STAMP = os.environ.get("STAMP", "")
class Stamper:
    def __init__(self, a, tag, wg=0, base=70):
        self.a = a; self.on = (STAMP == tag); self.n = 0; self.wg = int(os.environ.get("STAMPWG", wg)); self.b = base
    def stamp(self):
        if not self.on: return
        self.a(f"s_memtime s[{self.b+2*self.n}:{self.b+1+2*self.n}]"); self.n += 1
    def real(self):
        if not self.on: return
        self.a(f"s_memrealtime s[{self.b+2*self.n}:{self.b+1+2*self.n}]"); self.n += 1
    def flush(self, wave_sgpr, lbl):
        if not self.on: return
        a = self.a
        a(f"s_cmp_eq_u32 s2, {self.wg}")
        a(f"s_cbranch_scc0 {lbl}")
        a(f"s_cmp_eq_u32 s{wave_sgpr}, 0")
        a(f"s_cbranch_scc0 {lbl}")
        a("s_load_dwordx2 s[68:69], s[0:1], 112")
        a("s_waitcnt lgkmcnt(0)")
        a("v_mov_b32 v0, 0")
        for i in range(self.n):
            a(f"v_mov_b32 v1, s{self.b+2*i}")
            a(f"global_store_dword v0, v1, s[68:69] offset:{64+4*i}")
        a("s_waitcnt vmcnt(0)")
        a.label(lbl)

TRACE = os.environ.get("TRACE", "")
def trace_begin(a, tag):
    if TRACE == tag: a("s_memrealtime s[96:97]")
def trace_end(a, tag):
    if TRACE != tag: return
    a("s_waitcnt vmcnt(0)")
    a("s_memrealtime s[98:99]")
    a("s_load_dwordx2 s[94:95], s[0:1], 120")
    a("s_waitcnt lgkmcnt(0)")
    a(f"s_add_u32 s94, s94, {WS_END}")
    a("s_addc_u32 s95, s95, 0")
    a("s_lshl_b32 s93, s2, 3")
    a("v_mov_b32 v0, s93")
    a("v_mov_b32 v2, s96")
    a("v_mov_b32 v3, s98")
    a("global_store_dwordx2 v0, v[2:3], s[94:95]")

class Lgkm:
    def __init__(self, a): self.a = a; self.q = []
    def issue(self, tag): self.q.append(tag)
    def need(self, tags):
        idx = -1
        for i, t in enumerate(self.q):
            if t in tags: idx = i
        if idx < 0: return
        n = len(self.q) - 1 - idx
        self.a(f"s_waitcnt lgkmcnt({min(n, 15)})")
        self.q = self.q[idx + 1:]
    def drain(self):
        self.a("s_waitcnt lgkmcnt(0)"); self.q = []
```

```python
from gen_common import *
import math, struct
def f2u(x): return struct.unpack("<I", struct.pack("<f", x))[0]
LOG2E = 1.4426950408889634
K1_LDS = 66560 + 8768

def dpp_reduce(a, regs):
    steps = ["row_shr:1 row_mask:0xf bank_mask:0xf bound_ctrl:0", "row_shr:2 row_mask:0xf bank_mask:0xf bound_ctrl:0",
             "row_shr:4 row_mask:0xf bank_mask:0xf bound_ctrl:0", "row_shr:8 row_mask:0xf bank_mask:0xf bound_ctrl:0",
             "row_bcast:15 row_mask:0xa bank_mask:0xf", "row_bcast:31 row_mask:0xc bank_mask:0xf"]
    a.nop(2)
    for st in steps:
        for r in regs:
            a(f"v_add_f32_dpp v{r}, v{r}, v{r} {st}")
    a.nop(2)

def gen_k1(a):
    kernel_begin(a, "k1_kernel")
    trace_begin(a, "1")
    a("s_cmp_ge_u32 s2, 512")
    a("s_cbranch_scc1 K1_END")
    a("s_cmp_ge_u32 s2, 64")
    a("s_cbranch_scc1 K1_KGEN")
    SL = Stamper(a, "1L", 5); SL.real(); SL.stamp()
    a("s_load_dwordx2 s[4:5], s[0:1], 0")
    a("s_load_dwordx2 s[6:7], s[0:1], 120")
    a("v_lshrrev_b32 v1, 6, v0")
    a("v_and_b32 v2, 63, v0")
    a("s_nop 0")
    a("v_readfirstlane_b32 s3, v1")
    a("s_lshl_b32 s40, s2, 2")
    a("s_nop 2")
    a("s_add_u32 s40, s40, s3")
    a("s_lshl_b32 s40, s40, 3")
    a("s_mul_i32 s41, s40, 896")
    a("v_cmp_gt_u32 vcc, 56, v2")
    a("v_lshlrev_b32 v3, 4, v2")
    a("v_mov_b32 v4, 0x40000000")
    a("v_cndmask_b32 v3, v4, v3, vcc")
    a("s_mov_b64 s[44:45], vcc")
    a("s_waitcnt lgkmcnt(0)")
    srd(a, 8, 4, 2048 * 896)
    srd(a, 12, 6, 448 * UR_STRIDE, WS_UR)
    srd(a, 16, 6, 448 * 4096, WS_XT)
    for r in range(8):
        a(f"buffer_load_dwordx4 v[{8+4*r}:{11+4*r}], v3, s[8:11], s41 offen")
        if r < 7: a("s_add_u32 s41, s41, 896")
    a("v_mul_u32_u24 v5, 640, v2")
    a("s_lshl_b32 s46, s3, 4")
    a("v_add_u32 v6, s46, v5")
    a("s_sub_u32 s46, 48, s46")
    a("v_add_u32 v5, s46, v5")
    a("s_mov_b32 s48, 0x05040100")
    a("s_mov_b32 s49, 0x07060302")
    XF = 40
    for r in range(8):
        a(f"s_waitcnt vmcnt({7-r})")
        for k in range(4):
            a(f"v_lshlrev_b32 v{XF+8*r+2*k}, 16, v{8+4*r+k}")
            a(f"v_and_b32 v{XF+8*r+2*k+1}, 0xffff0000, v{8+4*r+k}")
        b = XF + 8 * r
        a(f"v_pk_add_f32 v[104:105], v[{b}:{b+1}], v[{b+2}:{b+3}]")
        a(f"v_pk_add_f32 v[106:107], v[{b+4}:{b+5}], v[{b+6}:{b+7}]")
        a(f"v_pk_add_f32 v[104:105], v[104:105], v[106:107]")
        a(f"v_add_f32 v{108+r}, v104, v105")
    SL.stamp()
    dpp_reduce(a, list(range(108, 116)))
    for r in range(8):
        a(f"v_mul_f32 v{108+r}, 0x{f2u(1.0/448.0):08x}, v{108+r}")
    a.nop(1)
    for r in range(8):
        a(f"v_readlane_b32 s{20+2*r}, v{108+r}, 63")
    for e in range(8):
        for p in range(4):
            a(f"v_perm_b32 v{168+4*e+p}, v{8+4*(2*p+1)+e//2}, v{8+4*(2*p)+e//2}, s{48+(e&1)}")
        a("s_mov_b64 exec, s[44:45]")
        a(f"ds_write_b128 v6, v[{168+4*e}:{171+4*e}] offset:{35840+80*e}")
        a("s_mov_b64 exec, -1")
    SL.stamp()
    for r in range(8):
        b = XF + 8 * r
        for k in range(4):
            a(f"v_pk_add_f32 v[104:105], v[{b+2*k}:{b+2*k+1}], s[{20+2*r}:{21+2*r}] op_sel_hi:[1,0] neg_lo:[0,1] neg_hi:[0,1]")
            if k == 0:
                a(f"v_pk_mul_f32 v[106:107], v[104:105], v[104:105]")
            else:
                a(f"v_pk_fma_f32 v[106:107], v[104:105], v[104:105], v[106:107]")
        a(f"v_add_f32 v104, v106, v107")
        a(f"v_cndmask_b32 v{108+r}, 0, v104, s[44:45]")
    dpp_reduce(a, list(range(108, 116)))
    for r in range(8):
        a(f"v_readlane_b32 s{60+r}, v{108+r}, 63")
    a.nop(4)
    for r in range(8):
        a(f"v_writelane_b32 v116, s{60+r}, {r}")
        a(f"v_writelane_b32 v117, s{20+2*r}, {r}")
    a.nop(2)
    a(f"v_mul_f32 v116, 0x{f2u(1.0/448.0):08x}, v116")
    a("v_cvt_pk_bf16_f32 v118, v116, v117")
    a("v_lshlrev_b32 v116, 16, v118")
    a("v_and_b32 v117, 0xffff0000, v118")
    a(f"v_add_f32 v116, 0x{f2u(1e-5):08x}, v116")
    a("v_cvt_pk_bf16_f32 v116, v116, v116")
    a("v_lshlrev_b32 v116, 16, v116")
    a("v_sqrt_f32 v116, v116")
    a("s_nop 0")
    a("v_cvt_pk_bf16_f32 v116, v116, v116")
    a("v_lshlrev_b32 v116, 16, v116")
    a("v_rcp_f32 v116, v116")
    a.nop(2)
    for r in range(8):
        a(f"v_readlane_b32 s{20+2*r}, v117, {r}")
        a(f"v_readlane_b32 s{60+2*r}, v116, {r}")
    a.nop(3)
    for r in range(8):
        b = XF + 8 * r
        for k in range(4):
            p = b + 2 * k
            a(f"v_pk_add_f32 v[{p}:{p+1}], v[{p}:{p+1}], s[{20+2*r}:{21+2*r}] op_sel_hi:[1,0] neg_lo:[0,1] neg_hi:[0,1]")
            a(f"v_cvt_pk_bf16_f32 v{104+k}, v{p}, v{p+1}")
        for k in range(4):
            p = b + 2 * k
            a(f"v_lshlrev_b32 v{p}, 16, v{104+k}")
            a(f"v_and_b32 v{p+1}, 0xffff0000, v{104+k}")
            a(f"v_pk_mul_f32 v[{p}:{p+1}], v[{p}:{p+1}], s[{60+2*r}:{61+2*r}] op_sel_hi:[1,0]")
    for e in range(8):
        for p in range(4):
            a(f"v_cvt_pk_bf16_f32 v{136+4*e+p}, v{XF+8*(7-2*p)+e}, v{XF+8*(6-2*p)+e}")
        a("s_mov_b64 exec, s[44:45]")
        a(f"ds_write_b128 v5, v[{136+4*e}:{139+4*e}] offset:{80*e}")
        a("s_mov_b64 exec, -1")
    a("v_lshrrev_b32 v5, 2, v0")
    a("v_and_b32 v6, 3, v0")
    a("v_mul_u32_u24 v7, 80, v5")
    a("v_lshl_add_u32 v7, v6, 4, v7")
    a("v_add_u32 v4, 35840, v7")
    a("v_lshlrev_b32 v5, 12, v5")
    a("v_lshl_add_u32 v5, v6, 4, v5")
    a("s_lshl_b32 s46, s2, 6")
    a("s_sub_u32 s47, 4032, s46")
    a("s_waitcnt lgkmcnt(0)")
    a("s_barrier")
    for i in range(7):
        a(f"ds_read_b128 v[{8+4*i}:{11+4*i}], v7 offset:{5120*i}")
        a(f"ds_read_b128 v[{40+4*i}:{43+4*i}], v4 offset:{5120*i}")
    for i in range(7):
        a(f"s_waitcnt lgkmcnt({13-2*i-1})")
        a(f"buffer_store_dwordx4 v[{8+4*i}:{11+4*i}], v5, s[12:15], s47 offen WT")
        a(f"buffer_store_dwordx4 v[{40+4*i}:{43+4*i}], v5, s[16:19], s46 offen WT")
        if i < 6:
            a("s_add_u32 s47, s47, 262144")
            a("s_add_u32 s46, s46, 262144")
    SL.stamp()
    a("s_waitcnt vmcnt(0)")
    SL.stamp(); SL.real()
    SL.flush(3, "K1_SL")
    trace_end(a, "1")
    a("s_endpgm")

    a.label("K1_KGEN")
    ST = Stamper(a, "1", 100); ST.real(); ST.stamp()
    a("s_load_dwordx4 s[4:7], s[0:1], 8")
    a("s_load_dwordx4 s[8:11], s[0:1], 24")
    a("s_load_dwordx4 s[12:15], s[0:1], 40")
    a("s_load_dwordx2 s[16:17], s[0:1], 56")
    a("s_load_dwordx2 s[18:19], s[0:1], 120")
    a("s_sub_u32 s3, s2, 64")
    a("v_lshlrev_b32 v1, 1, v0")
    a("s_lshl_b32 s20, s3, 9")
    a("s_lshl_b32 s21, s3, 1")
    a("v_mov_b32 v9, 0")
    a("s_waitcnt lgkmcnt(0)")
    n = 448 * 256 * 2
    for i, p in enumerate([4, 6, 8, 10, 12, 14]):
        srd(a, 24 + 4 * i, p, n)
    srd(a, 48, 16, 896)
    srd(a, 52, 18, 448 * KP_STRIDE, WS_KP)
    for i in range(6):
        a(f"buffer_load_ushort v{2+i}, v1, s[{24+4*i}:{27+4*i}], s20 offen")
    a("buffer_load_ushort v8, v9, s[48:51], s21 offen")
    a("v_lshlrev_b32 v1, 2, v0")
    T0 = 66560
    ZS = T0 + 4 * 2190
    a("v_lshlrev_b32 v50, 3, v0")
    a("v_subrev_u32 v50, 63, v50")
    a("v_and_b32 v51, 31, v0")
    a("v_lshlrev_b32 v51, 3, v51")
    a("v_add_u32 v51, 1985, v51")
    a(f"v_mov_b32 v52, {ZS}")
    a("v_lshrrev_b32 v53, 6, v0")
    a("s_nop 0")
    a("v_readfirstlane_b32 s22, v53")
    for ps, base in ((0, 50), (1, 51)):
        if ps == 1:
            a("s_cmp_eq_u32 s22, 0")
            a("s_cbranch_scc0 K1_NOP2")
        for k in range(5):
            o = 64 + 10 * ps + 2 * k
            a(f"v_add_u32 v53, {2*k}, v{base}")
            a(f"v_add_u32 v54, {2*k+1}, v{base}")
            a("v_cvt_f32_u32 v55, v53")
            a("v_cvt_f32_u32 v56, v54")
            a("v_cvt_pk_bf16_f32 v57, v55, v56")
            a("v_lshlrev_b32 v55, 16, v57")
            a("v_and_b32 v56, 0xffff0000, v57")
            a("v_cvt_u32_f32 v55, v55")
            a("v_cvt_u32_f32 v56, v56")
            a(f"v_lshlrev_b32 v55, 2, v55")
            a(f"v_lshlrev_b32 v56, 2, v56")
            a(f"v_add_u32 v55, {T0}, v55")
            a(f"v_add_u32 v56, {T0}, v56")
            a("v_cmp_lt_u32 vcc, 2047, v53")
            a("s_nop 1")
            a(f"v_cndmask_b32 v{o}, v55, v52, vcc")
            a("v_cmp_lt_u32 vcc, 2047, v54")
            a("s_nop 1")
            a(f"v_cndmask_b32 v{o+1}, v56, v52, vcc")
    a.label("K1_NOP2")
    a("v_mov_b32 v53, 0")
    a("ds_write_b32 v52, v53")
    ST.stamp()
    a("s_waitcnt vmcnt(0)")
    ST.stamp()
    for i in range(7):
        a(f"v_lshlrev_b32 v{2+i}, 16, v{2+i}")
    a(f"v_mul_f32 v8, 0x{f2u(LOG2E):08x}, v8")
    a("v_exp_f32 v8, v8")
    a("s_nop 0")
    a("v_cvt_pk_bf16_f32 v8, v8, v8")
    a("v_lshlrev_b32 v8, 16, v8")
    a("v_mul_f32 v10, v8, v2")
    a("v_mul_f32 v11, v8, v3")
    a("v_mul_f32 v4, v8, v4")
    a("v_mul_f32 v5, v8, v5")
    cmul(a, 30, 6, 4)
    def E(dst, p, conj=False):
        a(f"v_mul_f32 v46, 0x{f2u(p*LOG2E):08x}, v10")
        a(f"v_mul_f32 v47, 0x{f2u(p/(2*math.pi)):08x}, v11")
        a("v_exp_f32 v46, v46")
        a("v_fract_f32 v47, v47")
        a("v_cos_f32 v48, v47")
        a("v_sin_f32 v49, v47")
        a("s_nop 0")
        a(f"v_mul_f32 v{dst}, v46, v48")
        if conj:
            a(f"v_mul_f32 v{dst+1}, -v46, v49") if False else a(f"v_mul_f32_e64 v{dst+1}, -v46, v49")
        else:
            a(f"v_mul_f32 v{dst+1}, v46, v49")
    E(12, 1); E(26, 8, conj=True); E(28, 128)
    cmul(a, 14, 12, 12)
    cmul(a, 16, 14, 12)
    cmul(a, 18, 14, 14)
    cmul(a, 20, 18, 12)
    cmul(a, 22, 18, 14)
    cmul(a, 24, 18, 16)
    W = {1: 12, 2: 14, 3: 16, 4: 18, 5: 20, 6: 22, 7: 24}
    rot = [42, 43, 44, 45]
    cnt = [0]
    def put(src, addr):
        r = rot[cnt[0] % 4]; cnt[0] += 1
        a(f"v_cvt_pk_bf16_f32 v{r}, v{src}, v{src+1}")
        a(f"ds_write_b32 v1, v{r} offset:{addr}")
    Y0 = 48 * 1040
    a("v_mov_b32 v34, 1.0")
    a("v_mov_b32 v35, 0")
    put(34, Y0)
    put(26, Y0 + 1040)
    cur = 26
    for c in range(2, 16):
        nxt = 34 if cur != 34 else 36
        cmul(a, nxt, cur, 26)
        put(nxt, Y0 + 1040 * c)
        cur = nxt
    z = 30
    tmp = [38, 40]
    tc = 0
    for h in range(17):
        if h < 2: lst = [(8 * h + e, e) for e in range(8)]
        elif h < 4: lst = [(16 + 4 * (h - 2) + r, 2 * r) for r in range(4)]
        elif h < 8: lst = [(16 + 4 * (2 + e) + (h - 4), 4 * e) for e in range(2)]
        else: lst = [(32 + h - 8, 0)]
        for row, e in lst:
            if e == 0:
                put(z, row * 1040)
            else:
                t = tmp[tc % 2]; tc += 1
                cmul(a, t, z, W[e])
                put(t, row * 1040)
        if h < 16:
            nz = 32 if z == 30 else 30
            cmul(a, nz, z, 28)
            z = nz
    a("s_waitcnt lgkmcnt(0)")
    a("s_barrier")
    ST.stamp()
    a("v_lshrrev_b32 v50, 6, v0")
    a("s_nop 0")
    a("v_readfirstlane_b32 s22, v50")
    a("s_nop 3")
    a("s_cmp_ge_u32 s22, 3")
    a("s_cbranch_scc1 K1_KG_SKIP")
    a("v_and_b32 v51, 15, v0")
    a("v_bfe_u32 v52, v0, 4, 2")
    a("s_movk_i32 s23, 1040")
    a("v_mul_u32_u24 v53, 1040, v51")
    a("v_lshl_add_u32 v53, v52, 4, v53")
    a("s_mul_i32 s23, s22, 16640")
    a("v_add_u32 v54, s23, v53")
    a(f"v_add_u32 v55, {Y0}, v53")
    def rd(g):
        base = 96 + (g % 2) * 32
        for k in range(4):
            ks = 4 * g + k
            a(f"ds_read_b128 v[{base+8*k}:{base+8*k+3}], v54 offset:{64*ks}")
            a(f"ds_read_b128 v[{base+8*k+4}:{base+8*k+7}], v55 offset:{64*ks}")
    rd(0); rd(1)
    for g in range(4):
        a(f"s_waitcnt lgkmcnt({8 if g < 3 else 0})")
        base = 96 + (g % 2) * 32
        for k in range(4):
            c = "0" if (g == 0 and k == 0) else "v[56:59]"
            a(f"v_mfma_f32_16x16x32_bf16 v[56:59], v[{base+8*k}:{base+8*k+3}], v[{base+8*k+4}:{base+8*k+7}], {c}")
        if g < 2:
            rd(g + 2)
    a("v_cmp_gt_u32 vcc, 2, v52")
    a("s_cmp_eq_u32 s22, 0")
    a("s_cbranch_scc0 K1_T1")
    a("v_lshrrev_b32 v60, 1, v52")
    a("v_lshlrev_b32 v60, 7, v60")
    a("v_and_b32 v61, 1, v52")
    a("v_lshl_add_u32 v60, v61, 2, v60")
    a("v_mov_b32 v61, 1")
    a("s_branch K1_TD")
    a.label("K1_T1")
    a("s_cmp_eq_u32 s22, 1")
    a("s_cbranch_scc0 K1_T2")
    a("v_lshlrev_b32 v60, 7, v52")
    a("v_add_u32 v60, 256, v60")
    a("v_lshlrev_b32 v61, 2, v52")
    a("v_add_u32 v61, 504, v61")
    a("v_cndmask_b32 v60, v61, v60, vcc")
    a("v_mov_b32 v61, 128")
    a("v_cndmask_b32 v61, v61, 2, vcc") if False else None
    a("v_mov_b32 v62, 2")
    a("v_cndmask_b32 v61, v61, v62, vcc")
    a("s_branch K1_TD")
    a.label("K1_T2")
    a("v_lshlrev_b32 v60, 9, v52")
    a("v_add_u32 v60, 1024, v60")
    a("v_lshlrev_b32 v61, 3, v52")
    a("v_add_u32 v61, 2032, v61")
    a("v_cndmask_b32 v60, v61, v60, vcc")
    a("v_mov_b32 v61, 1")
    a("v_mov_b32 v62, 128")
    a("v_cndmask_b32 v61, v61, v62, vcc")
    a.label("K1_TD")
    a("v_lshl_add_u32 v60, v51, 3, v60")
    a("v_lshlrev_b32 v60, 2, v60")
    a(f"v_add_u32 v60, {T0}, v60")
    a("v_lshlrev_b32 v61, 2, v61")
    a.nop(8)
    for r in range(4):
        a(f"ds_write_b32 v60, v{56+r}")
        if r < 3: a("v_add_u32 v60, v60, v61")
    a.label("K1_KG_SKIP")
    a("s_waitcnt lgkmcnt(0)")
    a("s_barrier")
    ST.stamp()
    a(f"s_mul_i32 s23, s3, {KP_STRIDE}")
    def expand(ib, voff):
        for e in range(9):
            a(f"ds_read_b32 v{96+e}, v{ib+e}")
        a("s_waitcnt lgkmcnt(0)")
        for k in range(4):
            a(f"v_cvt_pk_bf16_f32 v{108+k}, v{96+2*k}, v{97+2*k}")
            a(f"v_cvt_pk_bf16_f32 v{112+k}, v{97+2*k}, v{98+2*k}")
        a(f"buffer_store_dwordx4 v[108:111], v{voff}, s[52:55], s23 offen WT")
        a(f"v_add_u32 v{voff+1}, 4608, v{voff}")
        a(f"buffer_store_dwordx4 v[112:115], v{voff+1}, s[52:55], s23 offen WT")
    a("v_lshlrev_b32 v50, 4, v0")
    expand(64, 50)
    a("s_cmp_eq_u32 s22, 0")
    a("s_cbranch_scc0 K1_END")
    a("v_and_b32 v52, 31, v0")
    a("v_lshlrev_b32 v52, 4, v52")
    a("v_add_u32 v52, 4096, v52")
    a("s_nop 1")
    a("s_nop 1")
    expand(74, 52)
    ST.stamp(); ST.real()
    ST.flush(22, "K1_ST")
    a.label("K1_END")
    trace_end(a, "1")
    a("s_endpgm")
    return descriptor("k1_kernel", 200)
```

```python
from gen_common import *
KC_STRIDE = 4416
U0 = 8 * KC_STRIDE
K2_LDS = U0 + 4096 + 8192
PSTR = 8704

def gen_k2(a):
    kernel_begin(a, "k2_kernel")
    trace_begin(a, "2")
    a("s_cmp_ge_u32 s2, 504")
    a("s_cbranch_scc1 K2_END")
    a("s_load_dwordx2 s[6:7], s[0:1], 120")
    a("s_cmp_ge_u32 s2, 448")
    a("s_cbranch_scc1 K2_CS")
    ST = Stamper(a, "2", 100); ST.real(); ST.stamp()
    a("s_load_dwordx2 s[4:5], s[0:1], 64")
    a("s_load_dwordx2 s[40:41], s[0:1], 96")
    a("v_lshrrev_b32 v1, 6, v0")
    a("v_and_b32 v2, 63, v0")
    a("s_nop 0")
    a("v_readfirstlane_b32 s3, v1")
    a("v_lshlrev_b32 v3, 4, v2")
    a("v_lshlrev_b32 v4, 4, v0")
    a("s_waitcnt lgkmcnt(0)")
    srd(a, 8, 6, 448 * KP_STRIDE, WS_KP)
    srd(a, 12, 6, 448 * UR_STRIDE, WS_UR)
    srd(a, 16, 6, 448 * RS, WS_XT)
    srd(a, 20, 6, 448 * RS, WS_HT)
    srd(a, 24, 4, 896)
    a(f"s_mul_i32 s30, s2, {KP_STRIDE}")
    a(f"s_mul_i32 s31, s2, {UR_STRIDE}")
    a(f"s_mul_i32 s32, s2, {RS}")
    a("s_lshl_b32 s33, s2, 1")
    for cc in range(2):
        a("s_lshl_b32 s34, s3, 2")
        a(f"s_add_u32 s34, s34, {cc*4608}")
        a("s_add_u32 s34, s34, s30")
        a(f"s_mul_i32 s35, s3, {2*KC_STRIDE}")
        if cc: a(f"s_add_u32 s35, s35, {KC_STRIDE}")
        for i in range(5):
            a("s_mov_b32 m0, s35")
            if i == 4: a("s_mov_b64 exec, 0xffff")
            else: a("s_nop 0")
            a("buffer_load_dwordx4 v3, s[8:11], s34 offen lds")
            if i == 4: a("s_mov_b64 exec, -1")
            else:
                a("s_add_u32 s34, s34, 1024")
                a("s_add_u32 s35, s35, 1024")
    a("v_lshrrev_b32 v13, 3, v2")
    a("v_lshrrev_b32 v14, 1, v13")
    a("s_and_b32 s34, s3, 1")
    a("s_lshl_b32 s34, s34, 2")
    a("v_or_b32 v14, s34, v14")
    a("v_and_b32 v15, 7, v2")
    a("v_xor_b32 v14, v14, v15")
    a("v_lshlrev_b32 v14, 4, v14")
    a("v_lshl_add_u32 v14, v13, 7, v14")
    a("s_lshl_b32 s34, s3, 10")
    a(f"s_add_u32 s35, s34, {U0}")
    a("s_add_u32 s34, s34, s31")
    a("s_mov_b32 m0, s35")
    a("s_nop 0")
    a("buffer_load_dwordx4 v14, s[12:15], s34 offen lds")
    a("buffer_load_dwordx4 v[8:11], v4, s[16:19], s32 offen")
    a("v_mov_b32 v5, 0")
    a("buffer_load_ushort v12, v5, s[24:27], s33 offen")
    srd(a, 44, 40, 1792 * 896)
    a("s_mul_i32 s42, s2, 3584")
    a("v_cmp_gt_u32 vcc, 224, v0")
    a("s_and_saveexec_b64 s[48:49], vcc")
    a("s_cbranch_execz K2_NOT")
    a("buffer_load_dwordx4 v[112:115], v4, s[44:47], s42 offen")
    a.label("K2_NOT")
    a("s_mov_b64 exec, -1")
    a("v_mov_b32 v16, 0"); a("v_mov_b32 v17, 0"); a("v_mov_b32 v18, 0"); a("v_mov_b32 v19, 0")
    a(f"ds_write_b128 v4, v[16:19] offset:{U0+4096}")
    a(f"ds_write_b128 v4, v[16:19] offset:{U0+4096+4096}")
    a("v_and_b32 v6, 31, v2")
    a("v_lshrrev_b32 v7, 5, v2")
    a("v_and_b32 v13, 7, v6")
    a(f"v_mul_u32_u24 v14, {KC_STRIDE}, v13")
    a("v_sub_u32 v13, v6, v13")
    a("v_lshl_add_u32 v14, v13, 1, v14")
    a("v_lshl_add_u32 v14, v7, 4, v14")
    a("v_sub_u32 v16, 31, v6")
    a("s_waitcnt vmcnt(0) lgkmcnt(0)")
    a("s_barrier")
    ST.stamp()
    ACC = 32
    AF = 64
    BF = 96
    splits = [(0, 33), (33, 66), (66, 99), (99, 132)]
    for w, (k0, k1) in enumerate(splits):
        if w < 3:
            a(f"s_cmp_eq_u32 s3, {w}")
            a(f"s_cbranch_scc0 K2_W{w+1}")
        def rdA(f): a(f"ds_read_b128 v[{AF+4*(f%8)}:{AF+4*(f%8)+3}], v14 offset:{32*f}")
        state = {"n4": None}
        def rdB(k):
            n4 = k // 4
            if state["n4"] != n4:
                state["n4"] = n4
                a(f"v_add_u32 v17, {n4}, v16")
                a("v_bfe_u32 v18, v17, 1, 3")
                a("v_xor_b32 v18, v18, v7")
                a("v_lshlrev_b32 v17, 7, v17")
                a("v_lshl_add_u32 v15, v18, 4, v17")
            ar = 15
            if k % 4:
                ar = 19 + (k % 4) - 1
                a(f"v_xor_b32 v{ar}, {32*(k%4)}, v15")
            a(f"ds_read_b128 v[{BF+4*(k%4)}:{BF+4*(k%4)+3}], v{ar} offset:{U0}")
        rdA(k0); rdA(k0 + 1)
        PF = 2
        for k in range(k0, min(k0 + PF, k1)):
            rdA(k + 2); rdB(k)
        for k in range(k0, k1):
            if k + PF < k1:
                rdA(k + PF + 2); rdB(k + PF)
                a(f"s_waitcnt lgkmcnt({2*PF})")
            else:
                a(f"s_waitcnt lgkmcnt({2*(k1-1-k)})")
            c0 = "0" if k == k0 else f"v[{ACC}:{ACC+15}]"
            c1 = "0" if k == k0 else f"v[{ACC+16}:{ACC+31}]"
            b = BF + 4 * (k % 4)
            f0 = AF + 4 * (k % 8); f1 = AF + 4 * ((k + 2) % 8)
            a(f"v_mfma_f32_32x32x16_bf16 v[{ACC}:{ACC+15}], v[{f0}:{f0+3}], v[{b}:{b+3}], {c0}")
            a(f"v_mfma_f32_32x32x16_bf16 v[{ACC+16}:{ACC+31}], v[{f1}:{f1+3}], v[{b}:{b+3}], {c1}")
        if w < 3:
            a("s_branch K2_RED")
            a.label(f"K2_W{w+1}")
    a.label("K2_RED")
    ST.stamp()
    a("s_barrier")
    ST.stamp()
    a("v_mul_u32_u24 v20, 272, v6")
    a("v_lshl_add_u32 v20, v7, 4, v20")
    a(f"s_mul_i32 s34, s3, {PSTR}")
    a("v_add_u32 v20, s34, v20")
    a.nop(12)
    for jt in range(2):
        for q in range(4):
            r = ACC + 16 * jt + 4 * q
            a(f"ds_write_b128 v20, v[{r}:{r+3}] offset:{128*jt+32*q}")
    a("v_lshrrev_b32 v21, 3, v0")
    a("v_and_b32 v22, 7, v0")
    a("v_mul_u32_u24 v21, 272, v21")
    a("v_lshl_add_u32 v21, v22, 5, v21")
    a("v_lshlrev_b32 v22, 3, v0")
    a("v_sub_u32 v22, 2040, v22")
    a("v_lshrrev_b32 v23, 6, v22")
    a("v_bfe_u32 v22, v22, 3, 3")
    a("v_bfe_u32 v24, v23, 1, 3")
    a("v_xor_b32 v22, v22, v24")
    a("v_lshlrev_b32 v22, 4, v22")
    a("v_lshl_add_u32 v22, v23, 7, v22")
    a(f"ds_read_b128 v[24:27], v22 offset:{U0}")
    a("s_waitcnt lgkmcnt(0)")
    a("s_barrier")
    for w in range(4):
        a(f"ds_read_b128 v[{64+8*w}:{67+8*w}], v21 offset:{PSTR*w}")
        a(f"ds_read_b128 v[{68+8*w}:{71+8*w}], v21 offset:{PSTR*w+16}")
    for k in range(4):
        a(f"v_and_b32 v{96+(7-(2*k+1))}, 0xffff0000, v{24+k}")
        a(f"v_lshlrev_b32 v{96+(7-2*k)}, 16, v{24+k}")
    for k in range(4):
        a(f"v_lshlrev_b32 v{104+2*k}, 16, v{8+k}")
        a(f"v_and_b32 v{105+2*k}, 0xffff0000, v{8+k}")
    a("v_lshlrev_b32 v12, 16, v12")
    for k in range(4):
        a(f"v_mul_f32 v{96+2*k}, v12, v{96+2*k}")
        a(f"v_mul_f32 v{97+2*k}, v12, v{97+2*k}")
        a(f"v_cvt_pk_bf16_f32 v{28+k}, v{96+2*k}, v{97+2*k}")
        a(f"v_lshlrev_b32 v{96+2*k}, 16, v{28+k}")
        a(f"v_and_b32 v{97+2*k}, 0xffff0000, v{28+k}")
    a("s_waitcnt lgkmcnt(0)")
    for k in range(4):
        p = 64 + 2 * k
        a(f"v_pk_add_f32 v[{p}:{p+1}], v[{p}:{p+1}], v[{p+8}:{p+9}]")
        a(f"v_pk_add_f32 v[{p+16}:{p+17}], v[{p+16}:{p+17}], v[{p+24}:{p+25}]")
        a(f"v_pk_add_f32 v[{p}:{p+1}], v[{p}:{p+1}], v[{p+16}:{p+17}]")
        a(f"v_cvt_pk_bf16_f32 v{28+k}, v{p}, v{p+1}")
        a(f"v_lshlrev_b32 v{p}, 16, v{28+k}")
        a(f"v_and_b32 v{p+1}, 0xffff0000, v{28+k}")
        a(f"v_pk_add_f32 v[{p}:{p+1}], v[{p}:{p+1}], v[{96+2*k}:{97+2*k}]")
        a(f"v_cvt_pk_bf16_f32 v{28+k}, v{p}, v{p+1}")
        a(f"v_lshlrev_b32 v{p}, 16, v{28+k}")
        a(f"v_and_b32 v{p+1}, 0xffff0000, v{28+k}")
        a(f"v_pk_add_f32 v[{p}:{p+1}], v[{p}:{p+1}], v[{104+2*k}:{105+2*k}]")
        a(f"v_cvt_pk_bf16_f32 v{28+k}, v{p}, v{p+1}")
    a("buffer_store_dwordx4 v[28:31], v4, s[20:23], s32 offen WT")
    ST.stamp(); ST.real()
    ST.flush(3, "K2_ST")
    trace_end(a, "2")
    a("s_endpgm")
    a.label("K2_CS")
    a("s_load_dwordx4 s[8:11], s[0:1], 80")
    a("s_sub_u32 s3, s2, 448")
    a("v_and_b32 v1, 7, v0")
    a("v_lshrrev_b32 v2, 3, v0")
    a("s_mov_b32 s30, 50176")
    a("v_mul_lo_u32 v3, v2, s30")
    a("v_lshl_add_u32 v3, v1, 4, v3")
    a("s_waitcnt lgkmcnt(0)")
    a("s_cmp_ge_u32 s3, 28")
    a("s_cselect_b32 s8, s10, s8")
    a("s_cselect_b32 s9, s11, s9")
    a("s_cselect_b32 s31, 28, 0")
    a("s_sub_u32 s31, s3, s31")
    a("s_lshl_b32 s31, s31, 7")
    srd(a, 12, 8, 448 * 3584)
    srd(a, 16, 6, 3584 * 4, WS_CS)
    for r in range(14):
        a(f"buffer_load_dwordx4 v[{32+4*r}:{35+4*r}], v3, s[12:15], s31 offen")
        a("s_add_u32 s31, s31, 3584")
    for i in range(8): a(f"v_mov_b32 v{8+i}, 0")
    for r in range(14):
        a(f"s_waitcnt vmcnt({13-r})")
        for k in range(4):
            a(f"v_lshlrev_b32 v16, 16, v{32+4*r+k}")
            a(f"v_and_b32 v17, 0xffff0000, v{32+4*r+k}")
            a(f"v_pk_add_f32 v[{8+2*k}:{9+2*k}], v[{8+2*k}:{9+2*k}], v[16:17]")
    a("v_lshlrev_b32 v18, 8, v2")
    a("v_lshl_add_u32 v18, v1, 5, v18")
    a("ds_write_b128 v18, v[8:11]")
    a("ds_write_b128 v18, v[12:15] offset:16")
    a("s_waitcnt lgkmcnt(0)")
    a("s_barrier")
    a("v_cmp_gt_u32 vcc, 64, v0")
    a("s_and_saveexec_b64 s[34:35], vcc")
    a("s_cbranch_execz K2_END")
    a("v_lshlrev_b32 v18, 2, v0")
    for r in range(32):
        a(f"ds_read_b32 v{32+r}, v18 offset:{256*r}")
    a("s_waitcnt lgkmcnt(0)")
    for st in (16, 8, 4, 2, 1):
        for r in range(st):
            a(f"v_add_f32 v{32+r}, v{32+r}, v{32+r+st}")
    a("s_lshl_b32 s31, s3, 8")
    a("buffer_store_dword v32, v18, s[16:19], s31 offen")
    a.label("K2_END")
    trace_end(a, "2")
    a("s_endpgm")
    return descriptor("k2_kernel", 128)
```

```python
from gen_common import *
import math, struct, os
def f2u(x): return struct.unpack("<I", struct.pack("<f", x))[0]
LOG2E = 1.4426950408889634
NST = 6
STG = 24576
PB = NST * STG
K3_LDS = PB + 8192

def gen_k3(a, fused=False):
    kernel_begin(a, "k3_kernel")
    trace_begin(a, "3")
    if fused:
        a("s_cmp_ge_u32 s2, 448")
        a("s_cbranch_scc1 K3_END")
        a("s_cmp_ge_u32 s2, 224")
        a("s_cbranch_scc1 K4_START")
    else:
        a("s_cmp_ge_u32 s2, 224")
        a("s_cbranch_scc1 K3_END")
    ST = Stamper(a, "3"); ST.real(); ST.stamp()
    a("s_load_dwordx4 s[4:7], s[0:1], 80")
    a("s_load_dwordx2 s[8:9], s[0:1], 120")
    a("v_lshrrev_b32 v1, 6, v0")
    a("v_and_b32 v2, 63, v0")
    a("s_and_b32 s10, s2, 7")
    a("s_lshr_b32 s11, s2, 3")
    a("v_readfirstlane_b32 s3, v1")
    a("s_mul_i32 s12, s11, 37")
    a("s_lshr_b32 s12, s12, 8")
    a("s_mul_i32 s13, s12, 7")
    a("s_sub_u32 s11, s11, s13")
    a("s_and_b32 s13, s10, 1")
    a("s_mul_i32 s13, s13, 7")
    a("s_add_u32 s11, s11, s13")
    a("s_lshr_b32 s10, s10, 1")
    a("s_lshl_b32 s10, s10, 2")
    a("s_add_u32 s10, s10, s12")
    a("s_and_b32 s14, s3, 3")
    a("s_lshr_b32 s15, s3, 2")
    a("v_lshrrev_b32 v3, 4, v2")
    a("v_bfe_u32 v4, v2, 2, 2")
    a("v_xor_b32 v4, v4, v3")
    a("v_and_b32 v5, 3, v2")
    a("v_lshl_add_u32 v4, v4, 2, v5")
    a("v_lshlrev_b32 v4, 4, v4")
    a("v_mul_u32_u24 v5, 3584, v3")
    a("v_add_u32 v5, v5, v4")
    a("v_lshl_add_u32 v6, v3, 12, v4")
    a("s_lshl_b32 s36, s3, 2")
    a("s_mul_i32 s37, s36, 3584")
    a("s_lshl_b32 s38, s11, 8")
    a("s_add_u32 s37, s37, s38")
    a("s_lshl_b32 s39, s36, 12")
    a("s_lshl_b32 s38, s10, 8")
    a("s_add_u32 s39, s39, s38")
    a("s_lshl_b32 s40, s3, 10")
    a("v_lshrrev_b32 v7, 5, v2")
    a("v_lshlrev_b32 v8, 4, v7")
    a("s_lshl_b32 s41, s11, 9")
    a("s_lshl_b32 s42, s14, 7")
    a("s_add_u32 s41, s41, s42")
    a("s_add_u32 s42, s41, 7168")
    CS = 160
    def dma(c):
        st = (c % NST) * STG
        a(f"s_add_u32 s43, s40, {st}")
        a("s_mov_b32 m0, s43")
        a("s_add_u32 s43, s43, 8192")
        a("buffer_load_dwordx4 v5, s[16:19], s37 offen lds")
        a("s_mov_b32 m0, s43")
        a("s_add_u32 s43, s43, 8192")
        a("buffer_load_dwordx4 v5, s[20:23], s37 offen lds")
        a("s_mov_b32 m0, s43")
        a(f"s_add_u32 s37, s37, {32*3584}")
        a("buffer_load_dwordx4 v6, s[24:27], s39 offen lds")
        a(f"s_add_u32 s39, s39, {32*4096}")
    a("v_lshrrev_b32 v9, 4, v2")
    a("v_bfe_u32 v10, v2, 2, 2")
    a("v_and_b32 v11, 3, v2")
    a("v_lshrrev_b32 v12, 1, v9")
    a("v_lshl_add_u32 v12, v12, 3, v10")
    a("v_lshlrev_b32 v12, 8, v12")
    a("v_and_b32 v9, 1, v9")
    a("v_lshl_add_u32 v12, v9, 5, v12")
    a("v_lshl_add_u32 v12, v11, 3, v12")
    AD = 16
    a("v_xor_b32 v13, s14, v10")
    a(f"v_lshl_add_u32 v{AD}, v13, 6, v12")
    a("s_and_b32 s44, s14, 1")
    a("s_lshl_b32 s45, s15, 1")
    a("s_add_u32 s46, s45, s44")
    a("s_xor_b32 s47, s46, 1")
    a("v_xor_b32 v13, s46, v10")
    a(f"v_lshl_add_u32 v{AD+1}, v13, 6, v12")
    a("v_xor_b32 v13, s47, v10")
    a(f"v_lshl_add_u32 v{AD+2}, v13, 6, v12")
    a(f"v_add_u32 v{AD+1}, 16384, v{AD+1}")
    a(f"v_add_u32 v{AD+2}, 16384, v{AD+2}")
    for s in (1, 2):
        for i in range(3):
            a(f"v_add_u32 v{AD+3*s+i}, {2*STG*s}, v{AD+i}")
    a("v_lshrrev_b32 v9, 4, v0")
    a("v_bfe_u32 v10, v0, 2, 2")
    a("v_and_b32 v11, 3, v9")
    a("v_xor_b32 v10, v10, v11")
    a("v_and_b32 v11, 3, v0")
    a("v_lshl_add_u32 v10, v10, 2, v11")
    a("v_lshlrev_b32 v10, 4, v10")
    a("v_lshl_add_u32 v10, v9, 8, v10")
    a("v_add_u32 v192, 16384, v10")
    a(f"v_add_u32 v193, {16384+2*STG}, v10")
    a(f"v_add_u32 v194, {16384+4*STG}, v10")
    SA = 196
    for i in range(16): a(f"v_mov_b32 v{SA+i}, 0")
    a("s_waitcnt lgkmcnt(0)")
    if os.environ.get("FINE"): ST.stamp()
    srd(a, 16, 4, 448 * 3584)
    srd(a, 20, 6, 448 * 3584)
    srd(a, 24, 8, 448 * 4096, WS_HT)
    srd(a, 28, 8, 3584 * 4, WS_CS)
    srd(a, 32, 8, 224 * 2048 * 16, WS_ACT)
    for c in range(NST - 1):
        dma(c)
    if os.environ.get("FINE"): ST.stamp()
    ACC = 32
    FR = 96
    LG = Lgkm(a)
    def rd_piece(c, ks, p, i):
        st = c % NST
        base = AD + 3 * (st // 2)
        off = (st % 2) * STG + ks * 16 * 256
        f = FR + 16 * p
        if i == 4:
            a(f"ds_read_b128 v[{212+4*(c%2)}:{215+4*(c%2)}], v{192 + st // 2} offset:{(st % 2) * STG}")
            LG.issue(("S", c)); return
        ar, o2 = ((base, 0), (base, 8192), (base + 1, 0), (base + 2, 0))[i]
        a(f"ds_read_b64_tr_b16 v[{f+4*i}:{f+4*i+1}], v{ar} offset:{off+o2}")
        a(f"ds_read_b64_tr_b16 v[{f+4*i+2}:{f+4*i+3}], v{ar} offset:{off+o2+1024}")
        LG.issue((c, ks, i, 0)); LG.issue((c, ks, i, 1))
    def mm(c, ks, first, stat, nxt):
        p = ks
        f = FR + 16 * p
        n = 0
        for s in range(2):
            for g in range(2):
                need = [(c, ks, g, 0), (c, ks, g, 1), (c, ks, 2 + s, 0), (c, ks, 2 + s, 1)]
                if stat is not None: need.append(("S", stat[2]))
                LG.need(need)
                d = ACC + 32 * s + 16 * g
                cc = "0" if first else f"v[{d}:{d+15}]"
                a(f"v_mfma_f32_32x32x16_bf16 v[{d}:{d+15}], v[{f+4*g}:{f+4*g+3}], v[{f+8+4*s}:{f+8+4*s+3}], {cc}")
                if nxt is not None:
                    for i in nxt[3][n]: rd_piece(nxt[0], nxt[1], nxt[2], i)
                if stat is not None:
                    raw, els, _ = stat
                    for e in els[n]:
                        t = 220 + (e % 4)
                        k = e // 2
                        if e % 2 == 0: a(f"v_lshlrev_b32 v{t}, 16, v{raw+k}")
                        else: a(f"v_and_b32 v{t}, 0xffff0000, v{raw+k}")
                        a(f"v_add_f32 v{SA+e}, v{SA+e}, v{t}")
                        a(f"v_fmac_f32 v{SA+8+e}, v{t}, v{t}")
                n += 1
    NC = 14
    def dma_state_save(): return None
    a("s_cmp_ge_u32 s3, 4")
    a("s_cselect_b64 vcc, -1, 0")
    def cs_loads():
        for q in range(4):
            a(f"buffer_load_dwordx4 v[{CS+4*q}:{CS+4*q+3}], v8, s[28:31], s41 offen offset:{32*q}")
            a(f"buffer_load_dwordx4 v[{CS+16+4*q}:{CS+16+4*q+3}], v8, s[28:31], s42 offen offset:{32*q}")
    a(f"s_waitcnt vmcnt({3*(NST-2)})")
    a("s_barrier")
    ST.stamp()
    for i in (0, 2, 1, 3): rd_piece(0, 0, 0, i)
    for c in range(NC):
        issued = min(c + NST - 2, NC - 1)
        if c + 1 < NC:
            a(f"s_cbranch_vccz K3_BB{c}")
            a(f"s_waitcnt vmcnt({3*(issued-(c+1))})")
            a("s_barrier")
            a.label(f"K3_BB{c}")
        mm(c, 0, c == 0, None if c == 0 else (212 + 4 * ((c - 1) % 2), [[4], [5], [6], [7]], c - 1), (c, 1, 1, [[4, 0], [2], [1], [3]]))
        if c + 1 < NC:
            a(f"s_cbranch_vccnz K3_BA{c}")
            a(f"s_waitcnt vmcnt({3*(issued-(c+1))})")
            a("s_barrier")
            a.label(f"K3_BA{c}")
            if c + NST - 1 < NC: dma(c + NST - 1)
            if c + 1 == NC - 1: cs_loads()
            mm(c, 1, False, (212 + 4 * (c % 2), [[0], [1], [2], [3]], c), (c + 1, 0, 0, [[0], [2], [1], [3]]))
        else:
            mm(c, 1, False, (212 + 4 * (c % 2), [[0, 1], [2, 3], [4, 5], [6, 7]], c), None)
            a("s_nop 1")
            for i in range(8): a(f"v_permlane32_swap_b32 v{SA+i}, v{SA+8+i}")
            a("s_nop 1")
            for i in range(8): a(f"v_add_f32 v{SA+i}, v{SA+i}, v{SA+8+i}")
            a("s_nop 1")
            for i in range(4): a(f"v_permlane16_swap_b32 v{SA+i}, v{SA+4+i}")
            a("s_nop 1")
            for i in range(4): a(f"v_add_f32 v{SA+i}, v{SA+i}, v{SA+4+i}")
            a("v_and_b32 v10, 15, v2")
            a("v_lshrrev_b32 v11, 4, v2")
            a("v_lshlrev_b32 v10, 5, v10")
            a("v_and_b32 v12, 1, v11")
            a("v_lshl_add_u32 v10, v12, 4, v10")
            a("v_lshrrev_b32 v11, 1, v11")
            a("v_lshl_add_u32 v10, v11, 9, v10")
            a(f"s_add_u32 s49, s40, {PB}")
            a("v_add_u32 v10, s49, v10")
            a(f"ds_write_b128 v10, v[{SA}:{SA+3}]")
            a("v_and_b32 v15, 31, v2")
            a("s_lshl_b32 s49, s46, 7")
            a(f"s_add_u32 s49, s49, {PB}")
            a("v_lshlrev_b32 v28, 2, v15")
            a("v_add_u32 v28, s49, v28")
            a("s_lshl_b32 s49, s47, 7")
            a(f"s_add_u32 s49, s49, {PB}")
            a("v_lshlrev_b32 v29, 2, v15")
            a("v_add_u32 v29, s49, v29")
        if c in (0, 6): ST.stamp()
    ST.stamp()
    a("s_waitcnt lgkmcnt(0)")
    a("s_barrier")
    for s_, ar in ((0, 28), (1, 29)):
        for w in range(8):
            a(f"ds_read_b32 v{196+16*s_+2*w}, v{ar} offset:{1024*w}")
            a(f"ds_read_b32 v{197+16*s_+2*w}, v{ar} offset:{1024*w+512}")
        if s_ == 0: a("s_waitcnt lgkmcnt(0)") if False else None
    a("s_waitcnt lgkmcnt(0)")
    for s_ in range(2):
        b = 196 + 16 * s_
        for st in (8, 4, 2):
            for i in range(0, st, 2):
                a(f"v_pk_add_f32 v[{b+i}:{b+i+1}], v[{b+i}:{b+i+1}], v[{b+i+st}:{b+i+st+1}]")
        a(f"v_mov_b32 v{112+2*s_}, v{b}")
        a(f"v_mov_b32 v{113+2*s_}, v{b+1}")
    for s in range(2):
        S, Q = 112 + 2 * s, 113 + 2 * s
        M, R = 116 + 2 * s, 117 + 2 * s
        a(f"v_mul_f32 v{S}, 0x{f2u(1/448.0):08x}, v{S}")
        a(f"v_mul_f32 v{Q}, 0x{f2u(1/448.0):08x}, v{Q}")
        a(f"v_fma_f32 v{Q}, -v{S}, v{S}, v{Q}")
        a(f"v_max_f32 v{Q}, 0, v{Q}")
        a(f"v_cvt_pk_bf16_f32 v{Q}, v{Q}, v{S}")
        a(f"v_and_b32 v{M}, 0xffff0000, v{Q}")
        a(f"v_lshlrev_b32 v{Q}, 16, v{Q}")
        a(f"v_add_f32 v{Q}, 0x{f2u(1e-5):08x}, v{Q}")
        a(f"v_cvt_pk_bf16_f32 v{Q}, v{Q}, v{Q}")
        a(f"v_lshlrev_b32 v{Q}, 16, v{Q}")
        a(f"v_sqrt_f32 v{Q}, v{Q}")
        a("s_nop 0")
        a(f"v_cvt_pk_bf16_f32 v{Q}, v{Q}, v{Q}")
        a(f"v_lshlrev_b32 v{Q}, 16, v{Q}")
        a(f"v_rcp_f32 v{R}, v{Q}")
        a("s_nop 0")
        a(f"v_sub_f32 v{M}, 0, v{M}")
    ST.stamp()
    c0 = -2.0 * math.sqrt(2 / math.pi) * LOG2E
    c1 = c0 * 0.044715
    a(f"s_mov_b32 s50, 0x{f2u(c0):08x}"); a(f"s_mov_b32 s51, 0x{f2u(c0):08x}")
    a(f"s_mov_b32 s52, 0x{f2u(c1):08x}"); a(f"s_mov_b32 s53, 0x{f2u(c1):08x}")
    a("s_mov_b32 s54, 1.0"); a("s_mov_b32 s55, 1.0")
    a("s_lshl_b32 s56, s11, 4")
    a("s_lshl_b32 s57, s14, 2")
    a("s_add_u32 s56, s56, s57")
    a("s_lshl_b32 s56, s56, 15")
    a("s_lshl_b32 s57, s10, 11")
    a("s_add_u32 s56, s56, s57")
    a("v_lshlrev_b32 v28, 4, v15")
    a("v_lshl_add_u32 v28, v7, 15, v28")
    a("s_waitcnt vmcnt(0)")
    T = 120
    for s in range(2):
        M, R = 116 + 2 * s, 117 + 2 * s
        a(f"s_lshl_b32 s58, s{46+s}, 9")
        a("s_add_u32 s58, s58, s56")
        for q in range(4):
            o = 144 + 2 * q + 8 * s
            for h in range(2):
                g = ACC + 32 * s + 4 * q + 2 * h
                u = g + 16
                cg = CS + 4 * q + 2 * h; cu = cg + 16
                t = T + 8 * h
                a(f"v_pk_fma_f32 v[{g}:{g+1}], v[{cg}:{cg+1}], v[{M}:{M+1}], v[{g}:{g+1}] op_sel_hi:[1,0,1]")
                a(f"v_pk_fma_f32 v[{u}:{u+1}], v[{cu}:{cu+1}], v[{M}:{M+1}], v[{u}:{u+1}] op_sel_hi:[1,0,1]")
                a(f"v_pk_mul_f32 v[{g}:{g+1}], v[{g}:{g+1}], v[{M}:{M+1}] op_sel:[0,1] op_sel_hi:[1,1]")
                a(f"v_pk_mul_f32 v[{u}:{u+1}], v[{u}:{u+1}], v[{M}:{M+1}] op_sel:[0,1] op_sel_hi:[1,1]")
                a(f"v_pk_mul_f32 v[{t}:{t+1}], v[{g}:{g+1}], v[{g}:{g+1}]")
                a(f"v_pk_fma_f32 v[{t}:{t+1}], v[{t}:{t+1}], s[52:53], v[{t+2}:{t+3}]") if False else None
                a(f"v_pk_mul_f32 v[{t}:{t+1}], v[{t}:{t+1}], s[52:53]")
                a(f"v_pk_add_f32 v[{t}:{t+1}], v[{t}:{t+1}], s[50:51]")
                a(f"v_pk_mul_f32 v[{t}:{t+1}], v[{t}:{t+1}], v[{g}:{g+1}]")
                a(f"v_exp_f32 v{t}, v{t}")
                a(f"v_exp_f32 v{t+1}, v{t+1}")
                a(f"v_pk_mul_f32 v[{u}:{u+1}], v[{u}:{u+1}], v[{g}:{g+1}]")
                a(f"v_pk_add_f32 v[{t}:{t+1}], v[{t}:{t+1}], s[54:55]")
                a(f"v_rcp_f32 v{t}, v{t}")
                a(f"v_rcp_f32 v{t+1}, v{t+1}")
                a("s_nop 0")
                a(f"v_pk_mul_f32 v[{u}:{u+1}], v[{u}:{u+1}], v[{t}:{t+1}]")
                a(f"v_cvt_pk_bf16_f32 v{o+h}, v{u}, v{u+1}")
        for qp in range(2):
            o = 144 + 4 * qp + 8 * s
            a("s_nop 1")
            a(f"v_permlane32_swap_b32 v{o}, v{o+2}")
            a(f"v_permlane32_swap_b32 v{o+1}, v{o+3}")
            a(f"s_add_u32 s59, s58, {qp*65536}")
            a("s_nop 0")
            a(f"buffer_store_dwordx4 v[{o}:{o+3}], v28, s[32:35], s59 offen WT")
    if fused:
        a("s_load_dwordx2 s[4:5], s[0:1], 112")
        a("s_waitcnt vmcnt(0)")
        a("s_barrier")
        a("v_cmp_eq_u32 vcc, 0, v0")
        a("s_and_saveexec_b64 s[8:9], vcc")
        a("s_cbranch_execz K3_END")
        a("s_lshl_b32 s10, s10, 4")
        a("v_mov_b32 v1, s10")
        a("v_mov_b32 v2, 1")
        a("s_waitcnt lgkmcnt(0)")
        a("global_atomic_add v1, v2, s[4:5] sc1")
    ST.stamp(); ST.real()
    ST.flush(3, "K3_ST")
    a.label("K3_END")
    trace_end(a, "3")
    a("s_endpgm")
    if fused:
        import gen_k4
        gen_k4.gen_k4(a, fused=True)
    return descriptor("k3_kernel", 232)
```

```python
from gen_common import *
PST = 64 * 272
NST = 4
STG = 32768
HT0 = NST * STG
K4_LDS = HT0 + 8192

def gen_k4(a, fused=False):
    if fused:
        a.label("K4_START")
        a("s_sub_u32 s2, s2, 224")
        a("s_load_dwordx2 s[50:51], s[0:1], 112")
    else:
        kernel_begin(a, "k4_kernel")
        trace_begin(a, "4")
        a("s_cmp_ge_u32 s2, 224")
        a("s_cbranch_scc1 K4_END")
    ST = Stamper(a, "4", 0); ST.real(); ST.stamp()
    a("s_load_dwordx4 s[4:7], s[0:1], 96")
    a("s_load_dwordx2 s[8:9], s[0:1], 120")
    a("v_lshrrev_b32 v1, 6, v0")
    a("v_and_b32 v2, 63, v0")
    a("s_and_b32 s10, s2, 7")
    a("s_lshr_b32 s11, s2, 3")
    a("v_readfirstlane_b32 s3, v1")
    a("s_mul_i32 s12, s11, 37")
    a("s_lshr_b32 s12, s12, 8")
    a("s_mul_i32 s13, s12, 7")
    a("s_sub_u32 s11, s11, s13")
    a("s_lshl_b32 s10, s10, 2")
    a("s_add_u32 s10, s10, s12")
    a("s_lshr_b32 s14, s3, 1")
    a("s_and_b32 s15, s3, 1")
    a("v_lshlrev_b32 v3, 4, v2")
    a("v_lshrrev_b32 v4, 3, v2")
    a("v_bfe_u32 v5, v2, 2, 1")
    a("v_bfe_u32 v6, v2, 4, 1")
    a("v_xor_b32 v5, v5, v6")
    a("v_and_b32 v6, 3, v2")
    a("v_lshl_add_u32 v5, v5, 2, v6")
    a("v_lshlrev_b32 v5, 4, v5")
    a("v_mul_u32_u24 v6, 896, v4")
    a("v_add_u32 v5, v5, v6")
    a("v_and_b32 v6, 7, v2")
    a("v_lshlrev_b32 v6, 4, v6")
    a("v_lshl_add_u32 v6, v4, 12, v6")
    a("s_cmp_eq_u32 s15, 0")
    a("s_cselect_b64 vcc, -1, 0")
    a("v_cndmask_b32 v3, v5, v3, vcc")
    a("s_mul_i32 s38, s14, 56")
    a("s_lshl_b32 s38, s38, 15")
    a("s_lshl_b32 s39, s10, 10")
    a("s_add_u32 s38, s38, s39")
    a("s_mul_i32 s39, s14, 401408")
    a("s_lshl_b32 s40, s11, 7")
    a("s_add_u32 s39, s39, s40")
    a("s_cmp_eq_u32 s15, 0")
    a("s_cselect_b32 s38, s38, s39")
    a(f"s_movk_i32 s42, {8*896}")
    a("s_cselect_b32 s39, 32768, s42")
    a("s_lshl_b32 s40, s14, 13")
    a("s_lshl_b32 s41, s15, 12")
    a("s_add_u32 s41, s41, s40")
    a("v_lshrrev_b32 v9, 4, v2")
    a("v_bfe_u32 v10, v2, 2, 2")
    a("v_and_b32 v11, 3, v2")
    a("v_lshrrev_b32 v12, 1, v9")
    a("v_lshl_add_u32 v12, v12, 3, v10")
    a("v_lshlrev_b32 v12, 7, v12")
    a("v_and_b32 v9, 1, v9")
    a("v_lshl_add_u32 v12, v9, 5, v12")
    a("v_lshl_add_u32 v12, v11, 3, v12")
    a("v_lshrrev_b32 v13, 1, v10")
    a("v_lshl_add_u32 v16, v13, 6, v12")
    a("v_xor_b32 v13, 1, v13")
    a("v_lshl_add_u32 v17, v13, 6, v12")
    a("s_add_u32 s44, s40, 4096")
    a("v_add_u32 v16, s44, v16")
    a("v_add_u32 v17, s44, v17")
    a("v_lshrrev_b32 v7, 5, v2")
    a("v_and_b32 v15, 31, v2")
    a("v_lshlrev_b32 v18, 4, v15")
    a("v_lshl_add_u32 v18, v7, 10, v18")
    a("s_lshl_b32 s44, s15, 9")
    a("s_add_u32 s44, s44, s40")
    a("v_add_u32 v18, s44, v18")
    for i in range(3): a(f"v_add_u32 v{19+i}, 65536, v{16+i}")
    a("s_lshl_b32 s36, s11, 6")
    a("s_lshl_b32 s37, s3, 3")
    a("s_add_u32 s36, s36, s37")
    a("s_lshl_b32 s36, s36, 12")
    a("s_lshl_b32 s37, s10, 7")
    a("s_add_u32 s36, s36, s37")
    a("s_lshl_b32 s37, s3, 10")
    a(f"s_add_u32 s37, s37, {HT0}")
    a("s_waitcnt lgkmcnt(0)")
    srd(a, 16, 4, 1792 * 896)
    srd(a, 20, 6, 2048 * 896)
    srd(a, 24, 8, 448 * 4096, WS_HT)
    srd(a, 32, 8, 224 * 2048 * 16, WS_ACT)
    a("s_cmp_eq_u32 s15, 0")
    for i in range(4): a(f"s_cselect_b32 s{28+i}, s{32+i}, s{16+i}")
    def dma(c):
        st = (c % NST) * STG
        a(f"s_add_u32 s43, s41, {st}")
        for i in range(4):
            a("s_mov_b32 m0, s43")
            a("s_add_u32 s43, s43, 1024")
            a("buffer_load_dwordx4 v3, s[28:31], s38 offen sc1 lds" if fused else "buffer_load_dwordx4 v3, s[28:31], s38 offen lds")
            a("s_add_u32 s38, s38, s39")
    a("s_mov_b32 m0, s37")
    a("s_nop 0")
    a("buffer_load_dwordx4 v6, s[24:27], s36 offen lds")
    if fused:
        a("s_cmp_eq_u32 s15, 0")
        a("s_cbranch_scc1 K4_WAIT")
        for c in range(NST - 1): dma(c)
        a("s_barrier")
        a("s_branch K4_GO")
        a.label("K4_WAIT")
        a("s_cmp_eq_u32 s3, 0")
        a("s_cbranch_scc0 K4_W2")
        a("s_lshr_b32 s52, s10, 1")
        a("s_lshl_b32 s52, s52, 4")
        a("v_mov_b32 v30, s52")
        a.label("K4_POLL")
        a("global_load_dword v31, v30, s[50:51] sc1")
        a("s_waitcnt vmcnt(0)")
        a("v_readfirstlane_b32 s53, v31")
        a("s_nop 3")
        a("s_cmp_ge_u32 s53, 14")
        a("s_cbranch_scc1 K4_W2")
        a("s_sleep 4")
        a("s_branch K4_POLL")
        a.label("K4_W2")
        a("s_barrier")
        a("s_lshl_b32 s38, s38, 0")
        for c in range(NST - 1): dma(c)
        a.label("K4_GO")
    else:
        for c in range(NST - 1): dma(c)
    a("s_cmp_ge_u32 s3, 4")
    a("s_cselect_b64 vcc, -1, 0")
    ACC = 32
    FR = 64
    LG = Lgkm(a)
    def rd_piece(c, ks, i):
        st = c % NST
        hi = 3 if st >= 2 else 0
        off = (st % 2) * STG
        f = FR + 16 * ks
        if i < 2:
            a(f"ds_read_b64_tr_b16 v[{f+4*i}:{f+4*i+1}], v{16+hi+i} offset:{off+ks*2048}")
            a(f"ds_read_b64_tr_b16 v[{f+4*i+2}:{f+4*i+3}], v{16+hi+i} offset:{off+ks*2048+512}")
            LG.issue((c, ks, i, 0)); LG.issue((c, ks, i, 1))
        else:
            a(f"ds_read_b128 v[{f+8}:{f+11}], v{18+hi} offset:{off+ks*2048}")
            LG.issue((c, ks, 2, 0))
    def mm(c, ks, first, nxt):
        f = FR + 16 * ks
        for mt in range(2):
            LG.need([(c, ks, mt, 0), (c, ks, mt, 1), (c, ks, 2, 0)])
            d = ACC + 16 * mt
            cc = "0" if first else f"v[{d}:{d+15}]"
            a(f"v_mfma_f32_32x32x16_bf16 v[{d}:{d+15}], v[{f+4*mt}:{f+4*mt+3}], v[{f+8}:{f+11}], {cc}")
            if nxt is not None:
                for i in ((2, 0), (1,))[mt]: rd_piece(nxt[0], nxt[1], i)
    NC = 14
    a(f"s_waitcnt vmcnt({4*(NST-2)})")
    a("s_barrier")
    ST.stamp()
    for i in (2, 0, 1): rd_piece(0, 0, i)
    for c in range(NC):
        issued = min(c + NST - 2, NC - 1)
        if c + 1 < NC:
            a(f"s_cbranch_vccz K4_BB{c}")
            a(f"s_waitcnt vmcnt({4*(issued-(c+1))})")
            a("s_barrier")
            a.label(f"K4_BB{c}")
        mm(c, 0, c == 0, (c, 1))
        if c + 1 < NC:
            a(f"s_cbranch_vccnz K4_BA{c}")
            a(f"s_waitcnt vmcnt({4*(issued-(c+1))})")
            a("s_barrier")
            a.label(f"K4_BA{c}")
            if c + NST - 1 < NC: dma(c + NST - 1)
            mm(c, 1, False, (c + 1, 0))
        else:
            mm(c, 1, False, None)
    ST.stamp()
    a("s_barrier")
    ST.stamp()
    a("v_mul_u32_u24 v20, 272, v15")
    a("v_lshl_add_u32 v20, v7, 4, v20")
    a(f"s_mul_i32 s44, s14, {PST}")
    a(f"s_mul_i32 s45, s15, {32*272}")
    a("s_add_u32 s44, s44, s45")
    a("v_add_u32 v20, s44, v20")
    a.nop(12)
    for mt in range(2):
        for q in range(4):
            r = ACC + 16 * mt + 4 * q
            a(f"ds_write_b128 v20, v[{r}:{r+3}] offset:{mt*128+q*32}")
    a("v_lshrrev_b32 v21, 3, v0")
    a("v_and_b32 v22, 7, v0")
    a("v_mul_u32_u24 v23, 272, v21")
    a("v_lshl_add_u32 v23, v22, 5, v23")
    a("v_lshlrev_b32 v25, 10, v22")
    a("v_lshl_add_u32 v25, v21, 1, v25")
    a(f"v_add_u32 v25, {HT0}, v25")
    a("v_mul_u32_u24 v26, 896, v21")
    a("v_lshl_add_u32 v26, v22, 4, v26")
    a("s_mul_i32 s45, s10, 57344")
    a("s_lshl_b32 s46, s11, 7")
    a("s_add_u32 s45, s45, s46")
    for e in range(8):
        a(f"ds_read_u16 v{96+e}, v25 offset:{128*e}")
    a("s_waitcnt lgkmcnt(0)")
    a("s_barrier")
    for w in range(4):
        a(f"ds_read_b128 v[{32+8*w}:{35+8*w}], v23 offset:{PST*w}")
        a(f"ds_read_b128 v[{36+8*w}:{39+8*w}], v23 offset:{PST*w+16}")
    for e in range(8):
        a(f"v_lshlrev_b32 v{96+e}, 16, v{96+e}")
    a("s_waitcnt lgkmcnt(0)")
    for k in range(4):
        p = 32 + 2 * k
        a(f"v_pk_add_f32 v[{p}:{p+1}], v[{p}:{p+1}], v[{p+8}:{p+9}]")
        a(f"v_pk_add_f32 v[{p+16}:{p+17}], v[{p+16}:{p+17}], v[{p+24}:{p+25}]")
        a(f"v_pk_add_f32 v[{p}:{p+1}], v[{p}:{p+1}], v[{p+16}:{p+17}]")
        a(f"v_cvt_pk_bf16_f32 v104, v{p}, v{p+1}")
        a(f"v_lshlrev_b32 v{p}, 16, v104")
        a(f"v_and_b32 v{p+1}, 0xffff0000, v104")
        a(f"v_pk_add_f32 v[{p}:{p+1}], v[{p}:{p+1}], v[{96+2*k}:{97+2*k}]")
        a(f"v_cvt_pk_bf16_f32 v{108+k}, v{p}, v{p+1}")
    a("buffer_store_dwordx4 v[108:111], v26, s[20:23], s45 offen WT")
    ST.stamp(); ST.real()
    ST.flush(3, "K4_ST")
    a.label("K4_END")
    trace_end(a, "4")
    a("s_endpgm")
    return None if fused else descriptor("k4_kernel", 128)
```

```python
from gen_common import *
import os
import math, struct
def f2u(x): return struct.unpack("<I", struct.pack("<f", x))[0]
LOG2E = 1.4426950408889634
REP = int(os.environ.get('REP', 1))
KC_STRIDE = 4416
U0 = 8 * KC_STRIDE
PSTR = 8704
T0 = 66560
KPI = T0 + 9248
KA_LDS = KPI + 4672

def dpp_reduce(a, regs):
    steps = ["row_shr:1 row_mask:0xf bank_mask:0xf bound_ctrl:0", "row_shr:2 row_mask:0xf bank_mask:0xf bound_ctrl:0",
             "row_shr:4 row_mask:0xf bank_mask:0xf bound_ctrl:0", "row_shr:8 row_mask:0xf bank_mask:0xf bound_ctrl:0",
             "row_bcast:15 row_mask:0xa bank_mask:0xf", "row_bcast:31 row_mask:0xc bank_mask:0xf"]
    a.nop(2)
    for st in steps:
        for r in regs:
            a(f"v_add_f32_dpp v{r}, v{r}, v{r} {st}")
    a.nop(2)

def gen_ka(a):
    kernel_begin(a, "k1_kernel")
    trace_begin(a, "1")
    a("s_cmp_ge_u32 s2, 568")
    a("s_cbranch_scc1 K1_END")
    a("s_cmp_ge_u32 s2, 512")
    a("s_cbranch_scc1 K2_CS")
    a("s_cmp_ge_u32 s2, 64")
    a("s_cbranch_scc1 K1_KGEN")
    a("s_setprio 3")
    SL = Stamper(a, "1L", 5, 78); SL.real(); SL.stamp()
    a("s_load_dwordx2 s[4:5], s[0:1], 0")
    a("s_load_dwordx2 s[6:7], s[0:1], 120")
    a("v_lshrrev_b32 v1, 6, v0")
    a("v_and_b32 v2, 63, v0")
    a("s_nop 0")
    a("v_readfirstlane_b32 s3, v1")
    a("s_lshl_b32 s40, s2, 2")
    a("s_nop 2")
    a("s_add_u32 s40, s40, s3")
    a("s_lshl_b32 s40, s40, 3")
    a("s_mul_i32 s41, s40, 896")
    a("v_cmp_gt_u32 vcc, 56, v2")
    a("v_lshlrev_b32 v3, 4, v2")
    a("v_mov_b32 v4, 0x40000000")
    a("v_cndmask_b32 v3, v4, v3, vcc")
    a("s_mov_b64 s[44:45], vcc")
    a("s_waitcnt lgkmcnt(0)")
    srd(a, 8, 4, 2048 * 896)
    srd(a, 12, 6, 448 * UR_STRIDE, WS_UR)
    srd(a, 16, 6, 448 * 4096, WS_XT)
    for r in range(8):
        a(f"buffer_load_dwordx4 v[{8+4*r}:{11+4*r}], v3, s[8:11], s41 offen")
        if r < 7: a("s_add_u32 s41, s41, 896")
    a("v_mul_u32_u24 v5, 640, v2")
    a("s_lshl_b32 s46, s3, 4")
    a("v_add_u32 v6, s46, v5")
    a("s_sub_u32 s46, 48, s46")
    a("v_add_u32 v5, s46, v5")
    a("s_mov_b32 s48, 0x05040100")
    a("s_mov_b32 s49, 0x07060302")
    XF = 40
    for r in range(8):
        a(f"s_waitcnt vmcnt({7-r})")
        for k in range(4):
            a(f"v_lshlrev_b32 v{XF+8*r+2*k}, 16, v{8+4*r+k}")
            a(f"v_and_b32 v{XF+8*r+2*k+1}, 0xffff0000, v{8+4*r+k}")
        b = XF + 8 * r
        a(f"v_pk_add_f32 v[104:105], v[{b}:{b+1}], v[{b+2}:{b+3}]")
        a(f"v_pk_add_f32 v[106:107], v[{b+4}:{b+5}], v[{b+6}:{b+7}]")
        a(f"v_pk_add_f32 v[104:105], v[104:105], v[106:107]")
        a(f"v_add_f32 v{108+r}, v104, v105")
    SL.stamp()
    dpp_reduce(a, list(range(108, 116)))
    for r in range(8):
        a(f"v_mul_f32 v{108+r}, 0x{f2u(1.0/448.0):08x}, v{108+r}")
    a.nop(1)
    for r in range(8):
        a(f"v_readlane_b32 s{20+2*r}, v{108+r}, 63")
    for e in range(8):
        for p in range(4):
            a(f"v_perm_b32 v{168+4*e+p}, v{8+4*(2*p+1)+e//2}, v{8+4*(2*p)+e//2}, s{48+(e&1)}")
        a("s_mov_b64 exec, s[44:45]")
        a(f"ds_write_b128 v6, v[{168+4*e}:{171+4*e}] offset:{35840+80*e}")
        a("s_mov_b64 exec, -1")
    for r in range(8):
        b = XF + 8 * r
        for k in range(4):
            a(f"v_pk_add_f32 v[104:105], v[{b+2*k}:{b+2*k+1}], s[{20+2*r}:{21+2*r}] op_sel_hi:[1,0] neg_lo:[0,1] neg_hi:[0,1]")
            if k == 0:
                a(f"v_pk_mul_f32 v[106:107], v[104:105], v[104:105]")
            else:
                a(f"v_pk_fma_f32 v[106:107], v[104:105], v[104:105], v[106:107]")
        a(f"v_add_f32 v104, v106, v107")
        a(f"v_cndmask_b32 v{108+r}, 0, v104, s[44:45]")
    dpp_reduce(a, list(range(108, 116)))
    for r in range(8):
        a(f"v_readlane_b32 s{60+r}, v{108+r}, 63")
    a.nop(4)
    for r in range(8):
        a(f"v_writelane_b32 v116, s{60+r}, {r}")
        a(f"v_writelane_b32 v117, s{20+2*r}, {r}")
    a.nop(2)
    a(f"v_mul_f32 v116, 0x{f2u(1.0/448.0):08x}, v116")
    a("v_cvt_pk_bf16_f32 v118, v116, v117")
    a("v_lshlrev_b32 v116, 16, v118")
    a("v_and_b32 v117, 0xffff0000, v118")
    a(f"v_add_f32 v116, 0x{f2u(1e-5):08x}, v116")
    a("v_cvt_pk_bf16_f32 v116, v116, v116")
    a("v_lshlrev_b32 v116, 16, v116")
    a("v_sqrt_f32 v116, v116")
    a("s_nop 0")
    a("v_cvt_pk_bf16_f32 v116, v116, v116")
    a("v_lshlrev_b32 v116, 16, v116")
    a("v_rcp_f32 v116, v116")
    a.nop(2)
    for r in range(8):
        a(f"v_readlane_b32 s{20+2*r}, v117, {r}")
        a(f"v_readlane_b32 s{60+2*r}, v116, {r}")
    a.nop(3)
    for r in range(8):
        b = XF + 8 * r
        for k in range(4):
            p = b + 2 * k
            a(f"v_pk_add_f32 v[{p}:{p+1}], v[{p}:{p+1}], s[{20+2*r}:{21+2*r}] op_sel_hi:[1,0] neg_lo:[0,1] neg_hi:[0,1]")
            a(f"v_cvt_pk_bf16_f32 v{104+k}, v{p}, v{p+1}")
        for k in range(4):
            p = b + 2 * k
            a(f"v_lshlrev_b32 v{p}, 16, v{104+k}")
            a(f"v_and_b32 v{p+1}, 0xffff0000, v{104+k}")
            a(f"v_pk_mul_f32 v[{p}:{p+1}], v[{p}:{p+1}], s[{60+2*r}:{61+2*r}] op_sel_hi:[1,0]")
    for e in range(8):
        for p in range(4):
            a(f"v_cvt_pk_bf16_f32 v{136+4*e+p}, v{XF+8*(7-2*p)+e}, v{XF+8*(6-2*p)+e}")
        a("s_mov_b64 exec, s[44:45]")
        a(f"ds_write_b128 v5, v[{136+4*e}:{139+4*e}] offset:{80*e}")
        a("s_mov_b64 exec, -1")
    a("v_lshrrev_b32 v5, 2, v0")
    a("v_and_b32 v6, 3, v0")
    a("v_mul_u32_u24 v7, 80, v5")
    a("v_lshl_add_u32 v7, v6, 4, v7")
    a("v_add_u32 v4, 35840, v7")
    a("v_lshlrev_b32 v5, 12, v5")
    a("v_lshl_add_u32 v5, v6, 4, v5")
    a("s_lshl_b32 s46, s2, 6")
    a("s_sub_u32 s47, 4032, s46")
    SL.stamp()
    a("s_waitcnt lgkmcnt(0)")
    a("s_barrier")
    SL.stamp()
    for i in range(7):
        a(f"ds_read_b128 v[{8+4*i}:{11+4*i}], v7 offset:{5120*i}")
        a(f"ds_read_b128 v[{40+4*i}:{43+4*i}], v4 offset:{5120*i}")
    for i in range(7):
        a(f"s_waitcnt lgkmcnt({13-2*i-1})")
        a(f"buffer_store_dwordx4 v[{8+4*i}:{11+4*i}], v5, s[12:15], s47 offen WT")
        a(f"buffer_store_dwordx4 v[{40+4*i}:{43+4*i}], v5, s[16:19], s46 offen WT")
        if i < 6:
            a("s_add_u32 s47, s47, 262144")
            a("s_add_u32 s46, s46, 262144")
    SL.stamp()
    a("s_waitcnt vmcnt(0)")
    SL.stamp()
    a("s_barrier")
    a("s_load_dwordx2 s[4:5], s[0:1], 112")
    a(f"v_cmp_gt_u32 vcc, {REP}, v0")
    a("s_and_saveexec_b64 s[8:9], vcc")
    a("s_cbranch_execz KA_LNX")
    a("v_lshlrev_b32 v1, 6, v0")
    a("v_mov_b32 v2, 1")
    a("s_waitcnt lgkmcnt(0)")
    a("global_atomic_add v1, v2, s[4:5] sc1")
    a("s_waitcnt vmcnt(0)")
    a.label("KA_LNX")
    a("s_mov_b64 exec, -1")
    SL.stamp(); SL.real()
    SL.flush(3, "KA_SL")
    trace_end(a, "1")
    a("s_endpgm")

    a.label("K1_KGEN")
    ST = Stamper(a, "1", 100); ST.real(); ST.stamp()
    a("s_load_dwordx4 s[4:7], s[0:1], 8")
    a("s_load_dwordx4 s[8:11], s[0:1], 24")
    a("s_load_dwordx4 s[12:15], s[0:1], 40")
    a("s_load_dwordx2 s[16:17], s[0:1], 56")
    a("s_load_dwordx2 s[18:19], s[0:1], 120")
    a("s_load_dwordx2 s[56:57], s[0:1], 64")
    a("s_load_dwordx2 s[58:59], s[0:1], 96")
    a("s_load_dwordx2 s[60:61], s[0:1], 112")
    a("s_sub_u32 s3, s2, 64")
    a("v_lshlrev_b32 v1, 1, v0")
    a("s_lshl_b32 s20, s3, 9")
    a("s_lshl_b32 s21, s3, 1")
    a("v_mov_b32 v9, 0")
    a("s_waitcnt lgkmcnt(0)")
    n = 448 * 256 * 2
    for i, p in enumerate([4, 6, 8, 10, 12, 14]):
        srd(a, 24 + 4 * i, p, n)
    srd(a, 48, 16, 896)
    for i in range(6):
        a(f"buffer_load_ushort v{2+i}, v1, s[{24+4*i}:{27+4*i}], s20 offen")
    a("buffer_load_ushort v8, v9, s[48:51], s21 offen")
    a("v_lshlrev_b32 v1, 2, v0")
    a("v_lshlrev_b32 v50, 3, v0")
    a("v_subrev_u32 v50, 63, v50")
    a("v_and_b32 v51, 31, v0")
    a("v_lshlrev_b32 v51, 3, v51")
    a("v_add_u32 v51, 1985, v51")
    a("v_lshrrev_b32 v53, 6, v0")
    a("s_movk_i32 s62, 2303")
    a(f"v_mov_b32 v63, {T0}")
    a("v_readfirstlane_b32 s22, v53")
    for ps, base in ((0, 50), (1, 51)):
        if ps == 1:
            a("s_cmp_eq_u32 s22, 0")
            a("s_cbranch_scc0 K1_NOP2")
        for k in range(4):
            o = 64 + 8 * ps + 2 * k
            a(f"v_add_u32 v53, {2*k}, v{base}")
            a(f"v_add_u32 v54, {2*k+1}, v{base}")
            a("v_min_u32 v53, s62, v53")
            a("v_min_u32 v54, s62, v54")
            a("v_cvt_f32_u32 v55, v53")
            a("v_cvt_f32_u32 v56, v54")
            a("v_cvt_pk_bf16_f32 v57, v55, v56")
            a("v_lshlrev_b32 v55, 16, v57")
            a("v_and_b32 v56, 0xffff0000, v57")
            a("v_cvt_u32_f32 v55, v55")
            a("v_cvt_u32_f32 v56, v56")
            a(f"v_lshl_add_u32 v{o}, v55, 2, v63")
            a(f"v_lshl_add_u32 v{o+1}, v56, 2, v63")
    a.label("K1_NOP2")
    a("v_lshlrev_b32 v52, 2, v0")
    a(f"v_add_u32 v52, {T0+4*2049}, v52")
    a("v_mov_b32 v53, 0")
    a("ds_write_b32 v52, v53")
    a("ds_write_b32 v52, v53 offset:28")
    ST.stamp()
    a("s_waitcnt vmcnt(0)")
    ST.stamp()
    for i in range(7):
        a(f"v_lshlrev_b32 v{2+i}, 16, v{2+i}")
    srd(a, 24, 18, 448 * UR_STRIDE, WS_UR)
    srd(a, 28, 18, 448 * 4096, WS_XT)
    srd(a, 32, 18, 448 * 4096, WS_HT)
    srd(a, 36, 56, 896)
    srd(a, 40, 58, 1792 * 896)
    a(f"v_mul_f32 v8, 0x{f2u(LOG2E):08x}, v8")
    a("v_exp_f32 v8, v8")
    a("s_nop 0")
    a("v_cvt_pk_bf16_f32 v8, v8, v8")
    a("v_lshlrev_b32 v8, 16, v8")
    a("v_mul_f32 v10, v8, v2")
    a("v_mul_f32 v11, v8, v3")
    a("v_mul_f32 v4, v8, v4")
    a("v_mul_f32 v5, v8, v5")
    cmul(a, 30, 6, 4)
    def E(dst, p, conj=False):
        a(f"v_mul_f32 v46, 0x{f2u(p*LOG2E):08x}, v10")
        a(f"v_mul_f32 v47, 0x{f2u(p/(2*math.pi)):08x}, v11")
        a("v_exp_f32 v46, v46")
        a("v_fract_f32 v47, v47")
        a("v_cos_f32 v48, v47")
        a("v_sin_f32 v49, v47")
        a("s_nop 0")
        a(f"v_mul_f32 v{dst}, v46, v48")
        if conj:
            a(f"v_mul_f32 v{dst+1}, -v46, v49") if False else a(f"v_mul_f32_e64 v{dst+1}, -v46, v49")
        else:
            a(f"v_mul_f32 v{dst+1}, v46, v49")
    E(12, 1); E(26, 8, conj=True); E(28, 128)
    ST.stamp()
    cmul(a, 14, 12, 12)
    cmul(a, 16, 14, 12)
    cmul(a, 18, 14, 14)
    cmul(a, 20, 18, 12)
    cmul(a, 22, 18, 14)
    cmul(a, 24, 18, 16)
    W = {1: 12, 2: 14, 3: 16, 4: 18, 5: 20, 6: 22, 7: 24}
    rot = [42, 43, 44, 45]
    cnt = [0]
    def put(src, addr):
        r = rot[cnt[0] % 4]; cnt[0] += 1
        a(f"v_cvt_pk_bf16_f32 v{r}, v{src}, v{src+1}")
        a(f"ds_write_b32 v1, v{r} offset:{addr}")
    Y0 = 48 * 1040
    a("v_mov_b32 v34, 1.0")
    a("v_mov_b32 v35, 0")
    put(34, Y0)
    put(26, Y0 + 1040)
    cur = 26
    for c in range(2, 16):
        nxt = 34 if cur != 34 else 36
        cmul(a, nxt, cur, 26)
        put(nxt, Y0 + 1040 * c)
        cur = nxt
    ST.stamp()
    z = 30
    tmp = [38, 40]
    tc = 0
    for h in range(17):
        if h < 2: lst = [(8 * h + e, e) for e in range(8)]
        elif h < 4: lst = [(16 + 4 * (h - 2) + r, 2 * r) for r in range(4)]
        elif h < 8: lst = [(16 + 4 * (2 + e) + (h - 4), 4 * e) for e in range(2)]
        else: lst = [(32 + h - 8, 0)]
        for row, e in lst:
            if e == 0:
                put(z, row * 1040)
            else:
                t = tmp[tc % 2]; tc += 1
                cmul(a, t, z, W[e])
                put(t, row * 1040)
        if h < 16:
            nz = 32 if z == 30 else 30
            cmul(a, nz, z, 28)
            z = nz
    ST.stamp()
    a("s_waitcnt lgkmcnt(0)")
    a("s_barrier")
    ST.stamp()
    a("s_cmp_ge_u32 s22, 3")
    a("s_cbranch_scc1 KA_POLL")
    a("v_and_b32 v51, 15, v0")
    a("v_bfe_u32 v52, v0, 4, 2")
    a("s_movk_i32 s23, 1040")
    a("v_mul_u32_u24 v53, 1040, v51")
    a("v_lshl_add_u32 v53, v52, 4, v53")
    a("s_mul_i32 s23, s22, 16640")
    a("v_add_u32 v54, s23, v53")
    a(f"v_add_u32 v55, {Y0}, v53")
    def rd(g):
        base = 96 + (g % 2) * 32
        for k in range(4):
            ks = 4 * g + k
            a(f"ds_read_b128 v[{base+8*k}:{base+8*k+3}], v54 offset:{64*ks}")
            a(f"ds_read_b128 v[{base+8*k+4}:{base+8*k+7}], v55 offset:{64*ks}")
    rd(0); rd(1)
    for g in range(4):
        a(f"s_waitcnt lgkmcnt({8 if g < 3 else 0})")
        base = 96 + (g % 2) * 32
        for k in range(4):
            c = "0" if (g == 0 and k == 0) else "v[56:59]"
            a(f"v_mfma_f32_16x16x32_bf16 v[56:59], v[{base+8*k}:{base+8*k+3}], v[{base+8*k+4}:{base+8*k+7}], {c}")
        if g < 2:
            rd(g + 2)
    a("v_cmp_gt_u32 vcc, 2, v52")
    a("s_cmp_eq_u32 s22, 0")
    a("s_cbranch_scc0 K1_T1")
    a("v_lshrrev_b32 v60, 1, v52")
    a("v_lshlrev_b32 v60, 7, v60")
    a("v_and_b32 v61, 1, v52")
    a("v_lshl_add_u32 v60, v61, 2, v60")
    a("v_mov_b32 v61, 1")
    a("s_branch K1_TD")
    a.label("K1_T1")
    a("s_cmp_eq_u32 s22, 1")
    a("s_cbranch_scc0 K1_T2")
    a("v_lshlrev_b32 v60, 7, v52")
    a("v_add_u32 v60, 256, v60")
    a("v_lshlrev_b32 v61, 2, v52")
    a("v_add_u32 v61, 504, v61")
    a("v_cndmask_b32 v60, v61, v60, vcc")
    a("v_mov_b32 v61, 128")
    a("v_cndmask_b32 v61, v61, 2, vcc") if False else None
    a("v_mov_b32 v62, 2")
    a("v_cndmask_b32 v61, v61, v62, vcc")
    a("s_branch K1_TD")
    a.label("K1_T2")
    a("v_lshlrev_b32 v60, 9, v52")
    a("v_add_u32 v60, 1024, v60")
    a("v_mul_u32_u24 v61, 9, v52")
    a("v_add_u32 v61, 2030, v61")
    a("v_cndmask_b32 v60, v61, v60, vcc")
    a("v_mov_b32 v61, 1")
    a("v_mov_b32 v62, 128")
    a("v_cndmask_b32 v61, v61, v62, vcc")
    a.label("K1_TD")
    a("v_lshl_add_u32 v60, v51, 3, v60")
    a("v_lshlrev_b32 v60, 2, v60")
    a(f"v_add_u32 v60, {T0}, v60")
    a("v_lshlrev_b32 v61, 2, v61")
    a.nop(8)
    for r in range(4):
        a(f"ds_write_b32 v60, v{56+r}")
        if r < 3: a("v_add_u32 v60, v60, v61")
    a("s_branch K1_KG_SKIP")
    a.label("KA_POLL")
    a(f"s_and_b32 s23, s2, {REP-1}")
    a("s_lshl_b32 s23, s23, 6")
    a("v_mov_b32 v50, s23")
    a.label("KA_POLL_L")
    a("global_load_dword v51, v50, s[60:61] sc1")
    a("s_waitcnt vmcnt(0)")
    a("v_readfirstlane_b32 s23, v51")
    a("s_nop 3")
    a(f"s_cmp_ge_u32 s23, {int(os.environ.get('NEED', 64))}")
    a("s_cbranch_scc1 K1_KG_SKIP")
    a(f"s_sleep {int(os.environ.get('SLP', 8))}")
    a("s_branch KA_POLL_L")
    a.label("K1_KG_SKIP")
    a("s_waitcnt lgkmcnt(0)")
    a("s_barrier")
    ST.stamp()
    a("v_and_b32 v2, 63, v0")
    a("v_lshlrev_b32 v4, 4, v0")
    a("s_lshl_b32 s62, s3, 12")
    a("s_lshl_b32 s63, s3, 1")
    for e in range(8):
        a(f"ds_read_b32 v{96+e}, v{64+e} offset:{T0}") if False else a(f"ds_read_b32 v{96+e}, v{64+e} offset:0")
    a("v_lshrrev_b32 v13, 3, v2")
    a("v_lshrrev_b32 v14, 1, v13")
    a("s_and_b32 s46, s22, 1")
    a("s_lshl_b32 s46, s46, 2")
    a("v_or_b32 v14, s46, v14")
    a("v_and_b32 v15, 7, v2")
    a("v_xor_b32 v14, v14, v15")
    a("v_lshlrev_b32 v14, 4, v14")
    a("v_lshl_add_u32 v14, v13, 7, v14")
    a("s_lshl_b32 s46, s22, 10")
    a(f"s_add_u32 s47, s46, {U0}")
    a("s_add_u32 s46, s46, s62")
    a("s_mov_b32 m0, s47")
    a("s_nop 0")
    a("buffer_load_dwordx4 v14, s[24:27], s46 offen sc1 lds")
    a("buffer_load_dwordx4 v[8:11], v4, s[28:31], s62 offen sc1")
    a("v_mov_b32 v5, 0")
    a("buffer_load_ushort v12, v5, s[36:39], s63 offen")
    a("s_mul_i32 s46, s3, 3584")
    a("v_cmp_gt_u32 vcc, 224, v0")
    a("s_and_saveexec_b64 s[48:49], vcc")
    a("s_cbranch_execz K2_NOT")
    a("buffer_load_dwordx4 v[128:131], v4, s[40:43], s46 offen")
    a.label("K2_NOT")
    a("s_mov_b64 exec, -1")
    a("v_mov_b32 v16, 0"); a("v_mov_b32 v17, 0"); a("v_mov_b32 v18, 0"); a("v_mov_b32 v19, 0")
    a(f"ds_write_b128 v4, v[16:19] offset:{U0+4096}")
    a(f"ds_write_b128 v4, v[16:19] offset:{U0+4096+4096}")
    a("s_waitcnt lgkmcnt(2)")
    for k in range(4):
        a(f"v_cvt_pk_bf16_f32 v{104+k}, v{96+2*k}, v{97+2*k}")
    a(f"v_add_u32 v20, {KPI}, v4")
    a("ds_write_b128 v20, v[104:107]")
    a("s_cmp_eq_u32 s22, 0")
    a("s_cbranch_scc0 KA_NP2")
    for e in range(8):
        a(f"ds_read_b32 v{96+e}, v{72+e}")
    a("v_and_b32 v21, 31, v0")
    a("v_lshlrev_b32 v21, 4, v21")
    a(f"v_add_u32 v21, {KPI+4096}, v21")
    a("s_waitcnt lgkmcnt(0)")
    for k in range(4):
        a(f"v_cvt_pk_bf16_f32 v{108+k}, v{96+2*k}, v{97+2*k}")
    a("ds_write_b128 v21, v[108:111]")
    a.label("KA_NP2")
    a("s_waitcnt lgkmcnt(0)")
    a("s_barrier")
    def copies(src, dst):
        a(f"ds_read_b128 v[96:99], v{src}")
        a(f"ds_read_b128 v[100:103], v{src} offset:16")
        a("s_waitcnt lgkmcnt(0)")
        for i in range(1, 8): a(f"v_mov_b32 v{104+i-1}, v{96+i}")
        for i in range(6): a(f"v_alignbit_b32 v{112+i}, v{97+i}, v{96+i}, 16")
        for i in range(1, 7): a(f"v_alignbit_b32 v{120+i-1}, v{97+i}, v{96+i}, 16")
        quads = {0: 96, 2: 104, 4: 98, 6: 106, 1: 112, 3: 120, 5: 114, 7: 122}
        for rho in range(8):
            q = quads[rho]
            a(f"ds_write_b128 v{dst}, v[{q}:{q+3}] offset:{rho*KC_STRIDE}")
    copies(20, 4)
    a("s_cmp_eq_u32 s22, 0")
    a("s_cbranch_scc0 KA_NC2")
    a("v_and_b32 v21, 15, v0")
    a("v_lshlrev_b32 v21, 4, v21")
    a("v_add_u32 v22, 4096, v21")
    a(f"v_add_u32 v21, {KPI+4096}, v21")
    a("s_nop 1")
    copies(21, 22)
    a.label("KA_NC2")
    a("v_and_b32 v6, 31, v2")
    a("v_lshrrev_b32 v7, 5, v2")
    a("v_and_b32 v13, 7, v6")
    a(f"v_mul_u32_u24 v14, {KC_STRIDE}, v13")
    a("v_sub_u32 v13, v6, v13")
    a("v_lshl_add_u32 v14, v13, 1, v14")
    a("v_lshl_add_u32 v14, v7, 4, v14")
    a("v_sub_u32 v16, 31, v6")
    a("s_waitcnt vmcnt(0) lgkmcnt(0)")
    a("s_barrier")
    ST.stamp()
    ACC = 32
    AF = 64
    BF = 96
    splits = [(0, 33), (33, 66), (66, 99), (99, 132)]
    for w, (k0, k1) in enumerate(splits):
        if w < 3:
            a(f"s_cmp_eq_u32 s22, {w}")
            a(f"s_cbranch_scc0 K2_W{w+1}")
        def rdA(f): a(f"ds_read_b128 v[{AF+4*(f%8)}:{AF+4*(f%8)+3}], v14 offset:{32*f}")
        state = {"n4": None}
        def rdB(k):
            n4 = k // 4
            if state["n4"] != n4:
                state["n4"] = n4
                a(f"v_add_u32 v17, {n4}, v16")
                a("v_bfe_u32 v18, v17, 1, 3")
                a("v_xor_b32 v18, v18, v7")
                a("v_lshlrev_b32 v17, 7, v17")
                a("v_lshl_add_u32 v15, v18, 4, v17")
            ar = 15
            if k % 4:
                ar = 19 + (k % 4) - 1
                a(f"v_xor_b32 v{ar}, {32*(k%4)}, v15")
            a(f"ds_read_b128 v[{BF+4*(k%4)}:{BF+4*(k%4)+3}], v{ar} offset:{U0}")
        rdA(k0); rdA(k0 + 1)
        PF = 2
        for k in range(k0, min(k0 + PF, k1)):
            rdA(k + 2); rdB(k)
        for k in range(k0, k1):
            if k + PF < k1:
                rdA(k + PF + 2); rdB(k + PF)
                a(f"s_waitcnt lgkmcnt({2*PF})")
            else:
                a(f"s_waitcnt lgkmcnt({2*(k1-1-k)})")
            c0 = "0" if k == k0 else f"v[{ACC}:{ACC+15}]"
            c1 = "0" if k == k0 else f"v[{ACC+16}:{ACC+31}]"
            b = BF + 4 * (k % 4)
            f0 = AF + 4 * (k % 8); f1 = AF + 4 * ((k + 2) % 8)
            a(f"v_mfma_f32_32x32x16_bf16 v[{ACC}:{ACC+15}], v[{f0}:{f0+3}], v[{b}:{b+3}], {c0}")
            a(f"v_mfma_f32_32x32x16_bf16 v[{ACC+16}:{ACC+31}], v[{f1}:{f1+3}], v[{b}:{b+3}], {c1}")
        if w < 3:
            a("s_branch K2_RED")
            a.label(f"K2_W{w+1}")
    a.label("K2_RED")
    ST.stamp()
    a("s_barrier")
    ST.stamp()
    a("v_mul_u32_u24 v20, 272, v6")
    a("v_lshl_add_u32 v20, v7, 4, v20")
    a(f"s_mul_i32 s46, s22, {PSTR}")
    a("v_add_u32 v20, s46, v20")
    a.nop(12)
    for jt in range(2):
        for q in range(4):
            r = ACC + 16 * jt + 4 * q
            a(f"ds_write_b128 v20, v[{r}:{r+3}] offset:{128*jt+32*q}")
    a("v_lshrrev_b32 v21, 3, v0")
    a("v_and_b32 v22, 7, v0")
    a("v_mul_u32_u24 v21, 272, v21")
    a("v_lshl_add_u32 v21, v22, 5, v21")
    a("v_lshlrev_b32 v22, 3, v0")
    a("v_sub_u32 v22, 2040, v22")
    a("v_lshrrev_b32 v23, 6, v22")
    a("v_bfe_u32 v22, v22, 3, 3")
    a("v_bfe_u32 v24, v23, 1, 3")
    a("v_xor_b32 v22, v22, v24")
    a("v_lshlrev_b32 v22, 4, v22")
    a("v_lshl_add_u32 v22, v23, 7, v22")
    a(f"ds_read_b128 v[24:27], v22 offset:{U0}")
    a("s_waitcnt lgkmcnt(0)")
    a("s_barrier")
    for w in range(4):
        a(f"ds_read_b128 v[{64+8*w}:{67+8*w}], v21 offset:{PSTR*w}")
        a(f"ds_read_b128 v[{68+8*w}:{71+8*w}], v21 offset:{PSTR*w+16}")
    for k in range(4):
        a(f"v_and_b32 v{96+(7-(2*k+1))}, 0xffff0000, v{24+k}")
        a(f"v_lshlrev_b32 v{96+(7-2*k)}, 16, v{24+k}")
    for k in range(4):
        a(f"v_lshlrev_b32 v{104+2*k}, 16, v{8+k}")
        a(f"v_and_b32 v{105+2*k}, 0xffff0000, v{8+k}")
    a("v_lshlrev_b32 v12, 16, v12")
    for k in range(4):
        a(f"v_mul_f32 v{96+2*k}, v12, v{96+2*k}")
        a(f"v_mul_f32 v{97+2*k}, v12, v{97+2*k}")
        a(f"v_cvt_pk_bf16_f32 v{28+k}, v{96+2*k}, v{97+2*k}")
        a(f"v_lshlrev_b32 v{96+2*k}, 16, v{28+k}")
        a(f"v_and_b32 v{97+2*k}, 0xffff0000, v{28+k}")
    a("s_waitcnt lgkmcnt(0)")
    for k in range(4):
        p = 64 + 2 * k
        a(f"v_pk_add_f32 v[{p}:{p+1}], v[{p}:{p+1}], v[{p+8}:{p+9}]")
        a(f"v_pk_add_f32 v[{p+16}:{p+17}], v[{p+16}:{p+17}], v[{p+24}:{p+25}]")
        a(f"v_pk_add_f32 v[{p}:{p+1}], v[{p}:{p+1}], v[{p+16}:{p+17}]")
        a(f"v_cvt_pk_bf16_f32 v{28+k}, v{p}, v{p+1}")
        a(f"v_lshlrev_b32 v{p}, 16, v{28+k}")
        a(f"v_and_b32 v{p+1}, 0xffff0000, v{28+k}")
        a(f"v_pk_add_f32 v[{p}:{p+1}], v[{p}:{p+1}], v[{96+2*k}:{97+2*k}]")
        a(f"v_cvt_pk_bf16_f32 v{28+k}, v{p}, v{p+1}")
        a(f"v_lshlrev_b32 v{p}, 16, v{28+k}")
        a(f"v_and_b32 v{p+1}, 0xffff0000, v{28+k}")
        a(f"v_pk_add_f32 v[{p}:{p+1}], v[{p}:{p+1}], v[{104+2*k}:{105+2*k}]")
        a(f"v_cvt_pk_bf16_f32 v{28+k}, v{p}, v{p+1}")
    a("buffer_store_dwordx4 v[28:31], v4, s[32:35], s62 offen WT")
    ST.stamp(); ST.real()
    ST.flush(22, "K2_ST")
    trace_end(a, "1")
    a("s_endpgm")
    a.label("K2_CS")
    a("s_load_dwordx4 s[8:11], s[0:1], 80")
    a("s_load_dwordx2 s[6:7], s[0:1], 120")
    a("s_sub_u32 s3, s2, 512")
    a("v_and_b32 v1, 7, v0")
    a("v_lshrrev_b32 v2, 3, v0")
    a("s_mov_b32 s30, 50176")
    a("v_mul_lo_u32 v3, v2, s30")
    a("v_lshl_add_u32 v3, v1, 4, v3")
    a("s_waitcnt lgkmcnt(0)")
    a("s_cmp_ge_u32 s3, 28")
    a("s_cselect_b32 s8, s10, s8")
    a("s_cselect_b32 s9, s11, s9")
    a("s_cselect_b32 s31, 28, 0")
    a("s_sub_u32 s31, s3, s31")
    a("s_lshl_b32 s31, s31, 7")
    srd(a, 12, 8, 448 * 3584)
    srd(a, 16, 6, 3584 * 4, WS_CS)
    for r in range(14):
        a(f"buffer_load_dwordx4 v[{32+4*r}:{35+4*r}], v3, s[12:15], s31 offen")
        a("s_add_u32 s31, s31, 3584")
    for i in range(8): a(f"v_mov_b32 v{8+i}, 0")
    for r in range(14):
        a(f"s_waitcnt vmcnt({13-r})")
        for k in range(4):
            a(f"v_lshlrev_b32 v16, 16, v{32+4*r+k}")
            a(f"v_and_b32 v17, 0xffff0000, v{32+4*r+k}")
            a(f"v_pk_add_f32 v[{8+2*k}:{9+2*k}], v[{8+2*k}:{9+2*k}], v[16:17]")
    a("v_lshlrev_b32 v18, 8, v2")
    a("v_lshl_add_u32 v18, v1, 5, v18")
    a("ds_write_b128 v18, v[8:11]")
    a("ds_write_b128 v18, v[12:15] offset:16")
    a("s_waitcnt lgkmcnt(0)")
    a("s_barrier")
    a("v_cmp_gt_u32 vcc, 64, v0")
    a("s_and_saveexec_b64 s[34:35], vcc")
    a("s_cbranch_execz K1_END")
    a("v_lshlrev_b32 v18, 2, v0")
    for r in range(32):
        a(f"ds_read_b32 v{32+r}, v18 offset:{256*r}")
    a("s_waitcnt lgkmcnt(0)")
    for st in (16, 8, 4, 2, 1):
        for r in range(st):
            a(f"v_add_f32 v{32+r}, v{32+r}, v{32+r+st}")
    a("s_lshl_b32 s31, s3, 8")
    a("buffer_store_dword v32, v18, s[16:19], s31 offen")
    a.label("K1_END")
    trace_end(a, "1")
    a("s_endpgm")
    return descriptor("k1_kernel", 200)
```

```python
import sys, importlib, os
from gen_common import *
import gen_k1, gen_k2
kern = sys.argv[1] if len(sys.argv) > 1 else "1234"
out = sys.argv[2] if len(sys.argv) > 2 else f"cdna_kernels/{NAME}.s"
ref = open(f"cdna_kernels/{NAME}.s.ref").read().split("\n")
hdr = [l for l in ref if l.startswith(";") and "@launch" not in l]
a = Asm()
launches = []; descs = []
if "A" in kern:
    import gen_ka
    launches.append(f"; @launch kernel=k1_kernel grid=(568,1,1) block=(256,1,1) lds={gen_ka.KA_LDS}")
    descs.append(gen_ka.gen_ka(a))
if "1" in kern:
    launches.append(f"; @launch kernel=k1_kernel grid=(512,1,1) block=(256,1,1) lds={gen_k1.K1_LDS}")
    descs.append(gen_k1.gen_k1(a))
if "2" in kern:
    launches.append(f"; @launch kernel=k2_kernel grid=(504,1,1) block=(256,1,1) lds={gen_k2.K2_LDS}")
    descs.append(gen_k2.gen_k2(a))
if "3" in kern:
    import gen_k3
    launches.append(f"; @launch kernel=k3_kernel grid=(224,1,1) block=(512,1,1) lds={gen_k3.K3_LDS}")
    descs.append(gen_k3.gen_k3(a))
if "B" in kern:
    import gen_k3, gen_k4
    launches.append(f"; @launch kernel=k3_kernel grid=(448,1,1) block=(512,1,1) lds={max(gen_k3.K3_LDS, gen_k4.K4_LDS)}")
    descs.append(gen_k3.gen_k3(a, fused=True))
if "4" in kern:
    import gen_k4
    launches.append(f"; @launch kernel=k4_kernel grid=(224,1,1) block=(512,1,1) lds={gen_k4.K4_LDS}")
    descs.append(gen_k4.gen_k4(a))
txt = "\n".join(hdr) + "\n" + "\n".join(launches) + "\n"
txt += '.amdgcn_target "amdgcn-amd-amdhsa--gfx950"\n.text\n' + a.text()
txt += '.section .rodata,"a"\n' + "".join(descs)
txt = txt.replace(" WT", " " + os.environ.get("WT", "sc1")).replace("offen \n", "offen\n")
open(out, "w").write(txt)
print("wrote", out, len(txt))
```

```python
NAME = "sequential_preLN__ssm_conv_s4__geglu_ffn__prompt"

RS = 4352
AC = 33792
UR_STRIDE = RS
KP_STRIDE = 4608
WS_UR = 0
WS_XT = WS_UR + 448 * UR_STRIDE
WS_KP = WS_XT + 448 * RS
WS_HT = WS_KP + 448 * KP_STRIDE
WS_CS = WS_HT + 448 * RS
WS_ST = WS_CS + 16384
WS_ACT = WS_ST + 16384
WS_END = WS_ACT + 224 * AC

class Asm:
    def __init__(self):
        self.lines = []
    def __call__(self, s):
        for l in s.strip("\n").split("\n"):
            self.lines.append("    " + l.strip())
    def label(self, l):
        self.lines.append(l + ":")
    def raw(self, s):
        self.lines.append(s)
    def nop(self, n):
        while n > 0:
            k = min(n, 16)
            self(f"s_nop {k-1}")
            n -= k
    def text(self):
        return "\n".join(self.lines) + "\n"

def srd(a, dst, ptr_lo, nbytes, off=0):
    if off:
        a(f"s_add_u32 s{dst}, s{ptr_lo}, {off}")
        a(f"s_addc_u32 s{dst+1}, s{ptr_lo+1}, 0")
    else:
        a(f"s_mov_b32 s{dst}, s{ptr_lo}")
        a(f"s_mov_b32 s{dst+1}, s{ptr_lo+1}")
    a(f"s_mov_b32 s{dst+2}, {nbytes}")
    a(f"s_mov_b32 s{dst+3}, 0x00020000")

def kernel_begin(a, name):
    a.raw(f".globl {name}")
    a.raw(".p2align 8")
    a.raw(f".type {name},@function")
    a.label(name)

def descriptor(name, vgpr, sgpr=102, accum=None, total=None):
    accum = accum if accum is not None else (vgpr + 3) // 4 * 4
    total = total if total is not None else vgpr
    return f""".p2align 6
.amdhsa_kernel {name}
  .amdhsa_next_free_vgpr {total}
  .amdhsa_next_free_sgpr {sgpr}
  .amdhsa_accum_offset {accum}
  .amdhsa_group_segment_fixed_size 0
  .amdhsa_kernarg_size 128
  .amdhsa_user_sgpr_count 2
  .amdhsa_user_sgpr_kernarg_segment_ptr 1
  .amdhsa_system_sgpr_workgroup_id_x 1
.end_amdhsa_kernel
"""

def cmul(a, out, z, w):
    a(f"v_pk_mul_f32 v[{out}:{out+1}], v[{z}:{z+1}], v[{w}:{w+1}] op_sel:[0,0] op_sel_hi:[1,0]")
    a(f"v_pk_fma_f32 v[{out}:{out+1}], v[{z}:{z+1}], v[{w}:{w+1}], v[{out}:{out+1}] op_sel:[1,1,0] op_sel_hi:[0,1,1] neg_lo:[1,0,0]")

import os
STAMP = os.environ.get("STAMP", "")
class Stamper:
    def __init__(self, a, tag, wg=0, base=70):
        self.a = a; self.on = (STAMP == tag); self.n = 0; self.wg = int(os.environ.get("STAMPWG", wg)); self.b = base
    def stamp(self):
        if not self.on: return
        self.a(f"s_memtime s[{self.b+2*self.n}:{self.b+1+2*self.n}]"); self.n += 1
    def real(self):
        if not self.on: return
        self.a(f"s_memrealtime s[{self.b+2*self.n}:{self.b+1+2*self.n}]"); self.n += 1
    def flush(self, wave_sgpr, lbl):
        if not self.on: return
        a = self.a
        a(f"s_cmp_eq_u32 s2, {self.wg}")
        a(f"s_cbranch_scc0 {lbl}")
        a(f"s_cmp_eq_u32 s{wave_sgpr}, 0")
        a(f"s_cbranch_scc0 {lbl}")
        a("s_load_dwordx2 s[68:69], s[0:1], 112")
        a("s_waitcnt lgkmcnt(0)")
        a("v_mov_b32 v0, 0")
        for i in range(self.n):
            a(f"v_mov_b32 v1, s{self.b+2*i}")
            a(f"global_store_dword v0, v1, s[68:69] offset:{64+4*i}")
        a("s_waitcnt vmcnt(0)")
        a.label(lbl)

TRACE = os.environ.get("TRACE", "")
def trace_begin(a, tag):
    if TRACE == tag: a("s_memrealtime s[96:97]")
def trace_end(a, tag):
    if TRACE != tag: return
    a("s_waitcnt vmcnt(0)")
    a("s_memrealtime s[98:99]")
    a("s_load_dwordx2 s[94:95], s[0:1], 120")
    a("s_waitcnt lgkmcnt(0)")
    a(f"s_add_u32 s94, s94, {WS_END}")
    a("s_addc_u32 s95, s95, 0")
    a("s_lshl_b32 s93, s2, 3")
    a("v_mov_b32 v0, s93")
    a("v_mov_b32 v2, s96")
    a("v_mov_b32 v3, s98")
    a("global_store_dwordx2 v0, v[2:3], s[94:95]")

class Lgkm:
    def __init__(self, a): self.a = a; self.q = []
    def issue(self, tag): self.q.append(tag)
    def need(self, tags):
        idx = -1
        for i, t in enumerate(self.q):
            if t in tags: idx = i
        if idx < 0: return
        n = len(self.q) - 1 - idx
        self.a(f"s_waitcnt lgkmcnt({min(n, 15)})")
        self.q = self.q[idx + 1:]
    def drain(self):
        self.a("s_waitcnt lgkmcnt(0)"); self.q = []
```

```python
from gen_common import *
from gen_k1 import f2u, LOG2E, dpp_reduce
import math
K0_LDS = 2 * 21504 + 2048

def gen_k0(a):
    kernel_begin(a, "k0_kernel")
    trace_begin(a, "0")
    a("s_cmp_ge_u32 s2, 128")
    a("s_cbranch_scc1 K0_END")
    a("v_lshrrev_b32 v1, 6, v0")
    a("v_and_b32 v2, 63, v0")
    a("s_nop 0")
    a("v_readfirstlane_b32 s22, v1")
    a("s_setprio 2")
    a("s_load_dwordx2 s[4:5], s[0:1], 0")
    a("s_load_dwordx2 s[6:7], s[0:1], 120")
    a("s_lshl_b32 s40, s2, 2")
    a("s_add_u32 s40, s40, s22")
    a("s_lshl_b32 s40, s40, 2")
    a("s_mul_i32 s41, s40, 896")
    a("v_cmp_gt_u32 vcc, 56, v2")
    a("v_lshlrev_b32 v3, 4, v2")
    a("v_mov_b32 v4, 0x40000000")
    a("v_cndmask_b32 v3, v4, v3, vcc")
    a("v_mul_u32_u24 v5, 384, v2")
    a("v_mov_b32 v4, 43008")
    a("s_lshl_b32 s46, s22, 3")
    a("v_add_u32 v6, s46, v5")
    a("v_add_u32 v6, 21504, v6")
    a("s_sub_u32 s46, 24, s46")
    a("v_add_u32 v5, s46, v5")
    a("v_cndmask_b32 v5, v4, v5, vcc")
    a("v_cndmask_b32 v6, v4, v6, vcc")
    a("s_mov_b32 s48, 0x05040100")
    a("s_mov_b32 s49, 0x07060302")
    a("s_waitcnt lgkmcnt(0)")
    srd(a, 8, 4, 2048 * 896)
    for r in range(4):
        a(f"buffer_load_dwordx4 v[{8+4*r}:{11+4*r}], v3, s[8:11], s41 offen")
        if r < 3: a("s_add_u32 s41, s41, 896")
    srd(a, 12, 6, 448 * UR_STRIDE, WS_UR)
    srd(a, 16, 6, 448 * RS, WS_XT)
    XF = 24
    for r in range(4):
        a(f"s_waitcnt vmcnt({3-r})")
        b = XF + 8 * r
        for k in range(4):
            a(f"v_lshlrev_b32 v{b+2*k}, 16, v{8+4*r+k}")
            a(f"v_and_b32 v{b+2*k+1}, 0xffff0000, v{8+4*r+k}")
        t = 56 + 8 * (r % 2)
        a(f"v_pk_add_f32 v[{t}:{t+1}], v[{b}:{b+1}], v[{b+2}:{b+3}]")
        a(f"v_pk_add_f32 v[{t+2}:{t+3}], v[{b+4}:{b+5}], v[{b+6}:{b+7}]")
        a(f"v_pk_mul_f32 v[{t+4}:{t+5}], v[{b}:{b+1}], v[{b}:{b+1}]")
        a(f"v_pk_mul_f32 v[{t+6}:{t+7}], v[{b+4}:{b+5}], v[{b+4}:{b+5}]")
        a(f"v_pk_add_f32 v[{t}:{t+1}], v[{t}:{t+1}], v[{t+2}:{t+3}]")
        a(f"v_pk_fma_f32 v[{t+4}:{t+5}], v[{b+2}:{b+3}], v[{b+2}:{b+3}], v[{t+4}:{t+5}]")
        a(f"v_pk_fma_f32 v[{t+6}:{t+7}], v[{b+6}:{b+7}], v[{b+6}:{b+7}], v[{t+6}:{t+7}]")
        a(f"v_add_f32 v{72+r}, v{t}, v{t+1}")
        a(f"v_pk_add_f32 v[{t+4}:{t+5}], v[{t+4}:{t+5}], v[{t+6}:{t+7}]")
        a(f"v_add_f32 v{76+r}, v{t+4}, v{t+5}")
    for e in range(8):
        o = 80 + 2 * e
        for p in range(2):
            a(f"v_perm_b32 v{o+p}, v{8+4*(2*p+1)+e//2}, v{8+4*(2*p)+e//2}, s{48+(e&1)}")
        a(f"ds_write_b64 v6, v[{o}:{o+1}] offset:{48*e}")
    dpp_reduce(a, list(range(72, 80)))
    for r in range(8):
        a(f"v_readlane_b32 s{60+r}, v{72+r}, 63")
    a.nop(4)
    for r in range(4):
        a(f"v_writelane_b32 v56, s{60+r}, {r}")
        a(f"v_writelane_b32 v57, s{64+r}, {r}")
    a.nop(2)
    a(f"v_mul_f32 v56, 0x{f2u(1.0/448.0):08x}, v56")
    a(f"v_mul_f32 v57, 0x{f2u(1.0/448.0):08x}, v57")
    a("v_fma_f32 v57, -v56, v56, v57")
    a("v_max_f32 v57, 0, v57")
    a("v_cvt_pk_bf16_f32 v58, v57, v56")
    a("v_lshlrev_b32 v57, 16, v58")
    a("v_and_b32 v56, 0xffff0000, v58")
    a(f"v_add_f32 v57, 0x{f2u(1e-5):08x}, v57")
    a("v_cvt_pk_bf16_f32 v57, v57, v57")
    a("v_lshlrev_b32 v57, 16, v57")
    a("v_sqrt_f32 v57, v57")
    a("s_nop 0")
    a("v_cvt_pk_bf16_f32 v57, v57, v57")
    a("v_lshlrev_b32 v57, 16, v57")
    a("v_rcp_f32 v57, v57")
    a.nop(2)
    for r in range(4):
        a(f"v_readlane_b32 s{80+2*r}, v56, {r}")
        a(f"v_readlane_b32 s{60+2*r}, v57, {r}")
    a.nop(3)
    for k in range(4):
        for r in range(4):
            p = XF + 8 * r + 2 * k
            a(f"v_pk_add_f32 v[{p}:{p+1}], v[{p}:{p+1}], s[{80+2*r}:{81+2*r}] op_sel_hi:[1,0] neg_lo:[0,1] neg_hi:[0,1]")
    for r in range(4):
        for k in range(4):
            p = XF + 8 * r + 2 * k
            a(f"v_cvt_pk_bf16_f32 v{56+4*r+k}, v{p}, v{p+1}")
    for r in range(4):
        for k in range(4):
            p = XF + 8 * r + 2 * k
            a(f"v_lshlrev_b32 v{p}, 16, v{56+4*r+k}")
            a(f"v_and_b32 v{p+1}, 0xffff0000, v{56+4*r+k}")
    for k in range(4):
        for r in range(4):
            p = XF + 8 * r + 2 * k
            a(f"v_pk_mul_f32 v[{p}:{p+1}], v[{p}:{p+1}], s[{60+2*r}:{61+2*r}] op_sel_hi:[1,0]")
    for e in range(8):
        o = 96 + 2 * e
        for p in range(2):
            a(f"v_cvt_pk_bf16_f32 v{o+p}, v{XF+8*(3-2*p)+e}, v{XF+8*(2-2*p)+e}")
        a(f"ds_write_b64 v5, v[{o}:{o+1}] offset:{48*e}")
    a("v_lshrrev_b32 v5, 1, v0")
    a("v_and_b32 v6, 1, v0")
    a("v_mul_u32_u24 v7, 48, v5")
    a("v_lshl_add_u32 v7, v6, 4, v7")
    a("v_add_u32 v4, 21504, v7")
    a(f"v_mul_u32_u24 v5, {RS}, v5")
    a("v_lshl_add_u32 v5, v6, 4, v5")
    a("s_lshl_b32 s46, s2, 5")
    a("s_sub_u32 s47, 4064, s46")
    a("s_waitcnt lgkmcnt(0)")
    a("s_barrier")
    def outp(i):
        a(f"ds_read_b128 v[{8+8*i}:{11+8*i}], v7 offset:{6144*i}")
        a(f"ds_read_b128 v[{12+8*i}:{15+8*i}], v4 offset:{6144*i}")
    for i in range(3): outp(i)
    a("s_cmp_lt_u32 s22, 2")
    a("s_cbranch_scc0 K0_L3")
    outp(3)
    a("s_waitcnt lgkmcnt(0)")
    a(f"s_add_u32 s50, s47, {3*128*RS}")
    a(f"s_add_u32 s51, s46, {3*128*RS}")
    a("buffer_store_dwordx4 v[32:35], v5, s[12:15], s50 offen WT")
    a("buffer_store_dwordx4 v[36:39], v5, s[16:19], s51 offen WT")
    a.label("K0_L3")
    a("s_waitcnt lgkmcnt(0)")
    for i in range(3):
        a(f"buffer_store_dwordx4 v[{8+8*i}:{11+8*i}], v5, s[12:15], s47 offen WT")
        a(f"buffer_store_dwordx4 v[{12+8*i}:{15+8*i}], v5, s[16:19], s46 offen WT")
        if i < 2:
            a(f"s_add_u32 s47, s47, {128*RS}")
            a(f"s_add_u32 s46, s46, {128*RS}")
    trace_end(a, "0")
    a("s_endpgm")

    a.label("K0_END")
    a("s_endpgm")
    return descriptor("k0_kernel", 128)
```

```python
from gen_common import *
import math, struct, os
def f2u(x): return struct.unpack("<I", struct.pack("<f", x))[0]
LOG2E = 1.4426950408889634
K1_LDS = 66560 + 8768

def dpp_reduce(a, regs):
    steps = ["row_shr:1 row_mask:0xf bank_mask:0xf bound_ctrl:0", "row_shr:2 row_mask:0xf bank_mask:0xf bound_ctrl:0",
             "row_shr:4 row_mask:0xf bank_mask:0xf bound_ctrl:0", "row_shr:8 row_mask:0xf bank_mask:0xf bound_ctrl:0",
             "row_bcast:15 row_mask:0xa bank_mask:0xf", "row_bcast:31 row_mask:0xc bank_mask:0xf"]
    a.nop(2)
    for st in steps:
        for r in regs:
            a(f"v_add_f32_dpp v{r}, v{r}, v{r} {st}")
    a.nop(2)

def gen_k1(a):
    kernel_begin(a, "k1_kernel")
    trace_begin(a, "1")
    a("s_cmp_ge_u32 s2, 512")
    a("s_cbranch_scc1 K1_END")
    a("s_cmp_ge_u32 s2, 64")
    a("s_cbranch_scc1 K1_KGEN")
    a(f"s_setprio {int(os.environ.get('LNPRIO', 0))}")
    a("s_load_dwordx2 s[4:5], s[0:1], 0")
    a("s_load_dwordx2 s[6:7], s[0:1], 120")
    a("v_lshrrev_b32 v1, 6, v0")
    a("v_and_b32 v2, 63, v0")
    a("s_nop 0")
    a("v_readfirstlane_b32 s3, v1")
    a("s_lshl_b32 s40, s2, 2")
    a("s_nop 2")
    a("s_add_u32 s40, s40, s3")
    a("s_lshl_b32 s40, s40, 3")
    a("s_mul_i32 s41, s40, 896")
    a("v_cmp_gt_u32 vcc, 56, v2")
    a("v_lshlrev_b32 v3, 4, v2")
    a("v_mov_b32 v4, 0x40000000")
    a("v_cndmask_b32 v3, v4, v3, vcc")
    a("s_mov_b64 s[44:45], vcc")
    a("s_waitcnt lgkmcnt(0)")
    srd(a, 8, 4, 2048 * 896)
    srd(a, 12, 6, 448 * UR_STRIDE, WS_UR)
    srd(a, 16, 6, 448 * RS, WS_XT)
    for r in range(8):
        a(f"buffer_load_dwordx4 v[{8+4*r}:{11+4*r}], v3, s[8:11], s41 offen")
        if r < 7: a("s_add_u32 s41, s41, 896")
    a("v_mul_u32_u24 v5, 640, v2")
    a("v_mov_b32 v4, 71680")
    a("s_lshl_b32 s46, s3, 4")
    a("v_add_u32 v6, s46, v5")
    a("v_add_u32 v6, 35840, v6")
    a("s_sub_u32 s46, 48, s46")
    a("v_add_u32 v5, s46, v5")
    a("v_cndmask_b32 v5, v4, v5, vcc")
    a("v_cndmask_b32 v6, v4, v6, vcc")
    a("s_mov_b32 s48, 0x05040100")
    a("s_mov_b32 s49, 0x07060302")
    XF = 40
    for r in range(8):
        a(f"s_waitcnt vmcnt({7-r})")
        b = XF + 8 * r
        for k in range(4):
            a(f"v_lshlrev_b32 v{b+2*k}, 16, v{8+4*r+k}")
            a(f"v_and_b32 v{b+2*k+1}, 0xffff0000, v{8+4*r+k}")
        t = 104 + 8 * (r % 2)
        a(f"v_pk_add_f32 v[{t}:{t+1}], v[{b}:{b+1}], v[{b+2}:{b+3}]")
        a(f"v_pk_add_f32 v[{t+2}:{t+3}], v[{b+4}:{b+5}], v[{b+6}:{b+7}]")
        a(f"v_pk_mul_f32 v[{t+4}:{t+5}], v[{b}:{b+1}], v[{b}:{b+1}]")
        a(f"v_pk_mul_f32 v[{t+6}:{t+7}], v[{b+4}:{b+5}], v[{b+4}:{b+5}]")
        a(f"v_pk_add_f32 v[{t}:{t+1}], v[{t}:{t+1}], v[{t+2}:{t+3}]")
        a(f"v_pk_fma_f32 v[{t+4}:{t+5}], v[{b+2}:{b+3}], v[{b+2}:{b+3}], v[{t+4}:{t+5}]")
        a(f"v_pk_fma_f32 v[{t+6}:{t+7}], v[{b+6}:{b+7}], v[{b+6}:{b+7}], v[{t+6}:{t+7}]")
        a(f"v_add_f32 v{120+r}, v{t}, v{t+1}")
        a(f"v_pk_add_f32 v[{t+4}:{t+5}], v[{t+4}:{t+5}], v[{t+6}:{t+7}]")
        a(f"v_add_f32 v{128+r}, v{t+4}, v{t+5}")
    for e in range(8):
        for p in range(4):
            a(f"v_perm_b32 v{168+4*e+p}, v{8+4*(2*p+1)+e//2}, v{8+4*(2*p)+e//2}, s{48+(e&1)}")
        a(f"ds_write_b128 v6, v[{168+4*e}:{171+4*e}] offset:{80*e}")
    dpp_reduce(a, list(range(120, 136)))
    for r in range(16):
        a(f"v_readlane_b32 s{60+r}, v{120+r}, 63")
    a.nop(4)
    for r in range(8):
        a(f"v_writelane_b32 v117, s{60+r}, {r}")
        a(f"v_writelane_b32 v116, s{68+r}, {r}")
    a.nop(2)
    a(f"v_mul_f32 v117, 0x{f2u(1.0/448.0):08x}, v117")
    a(f"v_mul_f32 v116, 0x{f2u(1.0/448.0):08x}, v116")
    a("v_fma_f32 v116, -v117, v117, v116")
    a("v_max_f32 v116, 0, v116")
    a("v_cvt_pk_bf16_f32 v118, v116, v117")
    a("v_lshlrev_b32 v116, 16, v118")
    a("v_and_b32 v117, 0xffff0000, v118")
    a(f"v_add_f32 v116, 0x{f2u(1e-5):08x}, v116")
    a("v_cvt_pk_bf16_f32 v116, v116, v116")
    a("v_lshlrev_b32 v116, 16, v116")
    a("v_sqrt_f32 v116, v116")
    a("s_nop 0")
    a("v_cvt_pk_bf16_f32 v116, v116, v116")
    a("v_lshlrev_b32 v116, 16, v116")
    a("v_rcp_f32 v116, v116")
    a.nop(2)
    for r in range(8):
        a(f"v_readlane_b32 s{20+2*r}, v117, {r}")
        a(f"v_readlane_b32 s{60+2*r}, v116, {r}")
    a.nop(3)
    for half in range(2):
        rows = range(4 * half, 4 * half + 4)
        for k in range(4):
            for r in rows:
                p = XF + 8 * r + 2 * k
                a(f"v_pk_add_f32 v[{p}:{p+1}], v[{p}:{p+1}], s[{20+2*r}:{21+2*r}] op_sel_hi:[1,0] neg_lo:[0,1] neg_hi:[0,1]")
        for r in rows:
            for k in range(4):
                p = XF + 8 * r + 2 * k
                a(f"v_cvt_pk_bf16_f32 v{104+4*(r%4)+k}, v{p}, v{p+1}")
        for r in rows:
            for k in range(4):
                p = XF + 8 * r + 2 * k
                a(f"v_lshlrev_b32 v{p}, 16, v{104+4*(r%4)+k}")
                a(f"v_and_b32 v{p+1}, 0xffff0000, v{104+4*(r%4)+k}")
        for k in range(4):
            for r in rows:
                p = XF + 8 * r + 2 * k
                a(f"v_pk_mul_f32 v[{p}:{p+1}], v[{p}:{p+1}], s[{60+2*r}:{61+2*r}] op_sel_hi:[1,0]")
    for e in range(8):
        for p in range(4):
            a(f"v_cvt_pk_bf16_f32 v{136+4*e+p}, v{XF+8*(7-2*p)+e}, v{XF+8*(6-2*p)+e}")
        a(f"ds_write_b128 v5, v[{136+4*e}:{139+4*e}] offset:{80*e}")
    a("v_lshrrev_b32 v5, 2, v0")
    a("v_and_b32 v6, 3, v0")
    a("v_mul_u32_u24 v7, 80, v5")
    a("v_lshl_add_u32 v7, v6, 4, v7")
    a("v_add_u32 v4, 35840, v7")
    a(f"v_mul_u32_u24 v5, {RS}, v5")
    a("v_lshl_add_u32 v5, v6, 4, v5")
    a("s_lshl_b32 s46, s2, 6")
    a("s_sub_u32 s47, 4032, s46")
    a("s_waitcnt lgkmcnt(0)")
    a("s_barrier")
    for i in range(7):
        a(f"ds_read_b128 v[{8+4*i}:{11+4*i}], v7 offset:{5120*i}")
        a(f"ds_read_b128 v[{40+4*i}:{43+4*i}], v4 offset:{5120*i}")
    for i in range(7):
        a(f"s_waitcnt lgkmcnt({13-2*i-1})")
        a(f"buffer_store_dwordx4 v[{8+4*i}:{11+4*i}], v5, s[12:15], s47 offen WT")
        a(f"buffer_store_dwordx4 v[{40+4*i}:{43+4*i}], v5, s[16:19], s46 offen WT")
        if i < 6:
            a(f"s_add_u32 s47, s47, {64*RS}")
            a(f"s_add_u32 s46, s46, {64*RS}")
    trace_end(a, "1")
    a("s_endpgm")

    a.label("K1_KGEN")
    ST = Stamper(a, "1", 100); ST.real(); ST.stamp()
    a("s_load_dwordx4 s[4:7], s[0:1], 8")
    a("s_load_dwordx4 s[8:11], s[0:1], 24")
    a("s_load_dwordx4 s[12:15], s[0:1], 40")
    a("s_load_dwordx2 s[16:17], s[0:1], 56")
    a("s_load_dwordx2 s[18:19], s[0:1], 120")
    a("s_sub_u32 s3, s2, 64")
    a("v_lshlrev_b32 v1, 1, v0")
    a("s_lshl_b32 s20, s3, 9")
    a("s_lshl_b32 s21, s3, 1")
    a("v_mov_b32 v9, 0")
    a("s_waitcnt lgkmcnt(0)")
    n = 448 * 256 * 2
    for i, p in enumerate([4, 6, 8, 10, 12, 14]):
        srd(a, 24 + 4 * i, p, n)
    srd(a, 48, 16, 896)
    srd(a, 52, 18, 448 * KP_STRIDE, WS_KP)
    for i in range(6):
        a(f"buffer_load_ushort v{2+i}, v1, s[{24+4*i}:{27+4*i}], s20 offen")
    a("buffer_load_ushort v8, v9, s[48:51], s21 offen")
    a("v_lshlrev_b32 v1, 2, v0")
    T0 = 66560
    ZS = T0 + 4 * 2190
    a("v_lshlrev_b32 v50, 3, v0")
    a("v_subrev_u32 v50, 63, v50")
    a("v_and_b32 v51, 31, v0")
    a("v_lshlrev_b32 v51, 3, v51")
    a("v_add_u32 v51, 1985, v51")
    a(f"v_mov_b32 v52, {ZS}")
    a("v_lshrrev_b32 v53, 6, v0")
    a("s_nop 0")
    a("v_readfirstlane_b32 s22, v53")
    for ps, base in ((0, 50), (1, 51)):
        if ps == 1:
            a("s_cmp_eq_u32 s22, 0")
            a("s_cbranch_scc0 K1_NOP2")
        for k in range(5):
            o = 64 + 10 * ps + 2 * k
            a(f"v_add_u32 v53, {2*k}, v{base}")
            a(f"v_add_u32 v54, {2*k+1}, v{base}")
            a("v_cvt_f32_u32 v55, v53")
            a("v_cvt_f32_u32 v56, v54")
            a("v_cvt_pk_bf16_f32 v57, v55, v56")
            a("v_lshlrev_b32 v55, 16, v57")
            a("v_and_b32 v56, 0xffff0000, v57")
            a("v_cvt_u32_f32 v55, v55")
            a("v_cvt_u32_f32 v56, v56")
            a(f"v_lshlrev_b32 v55, 2, v55")
            a(f"v_lshlrev_b32 v56, 2, v56")
            a(f"v_add_u32 v55, {T0}, v55")
            a(f"v_add_u32 v56, {T0}, v56")
            a("v_cmp_lt_u32 vcc, 2047, v53")
            a("s_nop 1")
            a(f"v_cndmask_b32 v{o}, v55, v52, vcc")
            a("v_cmp_lt_u32 vcc, 2047, v54")
            a("s_nop 1")
            a(f"v_cndmask_b32 v{o+1}, v56, v52, vcc")
    a.label("K1_NOP2")
    a("v_mov_b32 v53, 0")
    a("ds_write_b32 v52, v53")
    ST.stamp()
    a("s_waitcnt vmcnt(0)")
    ST.stamp()
    for i in range(7):
        a(f"v_lshlrev_b32 v{2+i}, 16, v{2+i}")
    a(f"v_mul_f32 v8, 0x{f2u(LOG2E):08x}, v8")
    a("v_exp_f32 v8, v8")
    a("s_nop 0")
    a("v_cvt_pk_bf16_f32 v8, v8, v8")
    a("v_lshlrev_b32 v8, 16, v8")
    a("v_mul_f32 v10, v8, v2")
    a("v_mul_f32 v11, v8, v3")
    a("v_mul_f32 v4, v8, v4")
    a("v_mul_f32 v5, v8, v5")
    cmul(a, 30, 6, 4)
    def E(dst, p, conj=False):
        a(f"v_mul_f32 v46, 0x{f2u(p*LOG2E):08x}, v10")
        a(f"v_mul_f32 v47, 0x{f2u(p/(2*math.pi)):08x}, v11")
        a("v_exp_f32 v46, v46")
        a("v_fract_f32 v47, v47")
        a("v_cos_f32 v48, v47")
        a("v_sin_f32 v49, v47")
        a("s_nop 0")
        a(f"v_mul_f32 v{dst}, v46, v48")
        if conj:
            a(f"v_mul_f32 v{dst+1}, -v46, v49") if False else a(f"v_mul_f32_e64 v{dst+1}, -v46, v49")
        else:
            a(f"v_mul_f32 v{dst+1}, v46, v49")
    E(12, 1); E(26, 8, conj=True); E(28, 128)
    cmul(a, 14, 12, 12)
    cmul(a, 16, 14, 12)
    cmul(a, 18, 14, 14)
    cmul(a, 20, 18, 12)
    cmul(a, 22, 18, 14)
    cmul(a, 24, 18, 16)
    W = {1: 12, 2: 14, 3: 16, 4: 18, 5: 20, 6: 22, 7: 24}
    rot = [42, 43, 44, 45]
    cnt = [0]
    def put(src, addr):
        r = rot[cnt[0] % 4]; cnt[0] += 1
        a(f"v_cvt_pk_bf16_f32 v{r}, v{src}, v{src+1}")
        a(f"ds_write_b32 v1, v{r} offset:{addr}")
    Y0 = 48 * 1040
    a("v_mov_b32 v34, 1.0")
    a("v_mov_b32 v35, 0")
    put(34, Y0)
    put(26, Y0 + 1040)
    cur = 26
    for c in range(2, 16):
        nxt = 34 if cur != 34 else 36
        cmul(a, nxt, cur, 26)
        put(nxt, Y0 + 1040 * c)
        cur = nxt
    z = 30
    tmp = [38, 40]
    tc = 0
    for h in range(17):
        if h < 2: lst = [(8 * h + e, e) for e in range(8)]
        elif h < 4: lst = [(16 + 4 * (h - 2) + r, 2 * r) for r in range(4)]
        elif h < 8: lst = [(16 + 4 * (2 + e) + (h - 4), 4 * e) for e in range(2)]
        else: lst = [(32 + h - 8, 0)]
        for row, e in lst:
            if e == 0:
                put(z, row * 1040)
            else:
                t = tmp[tc % 2]; tc += 1
                cmul(a, t, z, W[e])
                put(t, row * 1040)
        if h < 16:
            nz = 32 if z == 30 else 30
            cmul(a, nz, z, 28)
            z = nz
    a("s_waitcnt lgkmcnt(0)")
    a("s_barrier")
    ST.stamp()
    a("v_lshrrev_b32 v50, 6, v0")
    a("s_nop 0")
    a("v_readfirstlane_b32 s22, v50")
    a("s_nop 3")
    a("s_cmp_ge_u32 s22, 3")
    a("s_cbranch_scc1 K1_KG_SKIP")
    a("v_and_b32 v51, 15, v0")
    a("v_bfe_u32 v52, v0, 4, 2")
    a("s_movk_i32 s23, 1040")
    a("v_mul_u32_u24 v53, 1040, v51")
    a("v_lshl_add_u32 v53, v52, 4, v53")
    a("s_mul_i32 s23, s22, 16640")
    a("v_add_u32 v54, s23, v53")
    a(f"v_add_u32 v55, {Y0}, v53")
    def rd(g):
        base = 96 + (g % 2) * 32
        for k in range(4):
            ks = 4 * g + k
            a(f"ds_read_b128 v[{base+8*k}:{base+8*k+3}], v54 offset:{64*ks}")
            a(f"ds_read_b128 v[{base+8*k+4}:{base+8*k+7}], v55 offset:{64*ks}")
    rd(0); rd(1)
    for g in range(4):
        a(f"s_waitcnt lgkmcnt({8 if g < 3 else 0})")
        base = 96 + (g % 2) * 32
        for k in range(4):
            c = "0" if (g == 0 and k == 0) else "v[56:59]"
            a(f"v_mfma_f32_16x16x32_bf16 v[56:59], v[{base+8*k}:{base+8*k+3}], v[{base+8*k+4}:{base+8*k+7}], {c}")
        if g < 2:
            rd(g + 2)
    a("v_cmp_gt_u32 vcc, 2, v52")
    a("s_cmp_eq_u32 s22, 0")
    a("s_cbranch_scc0 K1_T1")
    a("v_lshrrev_b32 v60, 1, v52")
    a("v_lshlrev_b32 v60, 7, v60")
    a("v_and_b32 v61, 1, v52")
    a("v_lshl_add_u32 v60, v61, 2, v60")
    a("v_mov_b32 v61, 1")
    a("s_branch K1_TD")
    a.label("K1_T1")
    a("s_cmp_eq_u32 s22, 1")
    a("s_cbranch_scc0 K1_T2")
    a("v_lshlrev_b32 v60, 7, v52")
    a("v_add_u32 v60, 256, v60")
    a("v_lshlrev_b32 v61, 2, v52")
    a("v_add_u32 v61, 504, v61")
    a("v_cndmask_b32 v60, v61, v60, vcc")
    a("v_mov_b32 v61, 128")
    a("v_cndmask_b32 v61, v61, 2, vcc") if False else None
    a("v_mov_b32 v62, 2")
    a("v_cndmask_b32 v61, v61, v62, vcc")
    a("s_branch K1_TD")
    a.label("K1_T2")
    a("v_lshlrev_b32 v60, 9, v52")
    a("v_add_u32 v60, 1024, v60")
    a("v_lshlrev_b32 v61, 3, v52")
    a("v_add_u32 v61, 2032, v61")
    a("v_cndmask_b32 v60, v61, v60, vcc")
    a("v_mov_b32 v61, 1")
    a("v_mov_b32 v62, 128")
    a("v_cndmask_b32 v61, v61, v62, vcc")
    a.label("K1_TD")
    a("v_lshl_add_u32 v60, v51, 3, v60")
    a("v_lshlrev_b32 v60, 2, v60")
    a(f"v_add_u32 v60, {T0}, v60")
    a("v_lshlrev_b32 v61, 2, v61")
    a.nop(8)
    for r in range(4):
        a(f"ds_write_b32 v60, v{56+r}")
        if r < 3: a("v_add_u32 v60, v60, v61")
    a.label("K1_KG_SKIP")
    a("s_waitcnt lgkmcnt(0)")
    a("s_barrier")
    ST.stamp()
    a(f"s_mul_i32 s23, s3, {KP_STRIDE}")
    def expand(ib, voff):
        for e in range(9):
            a(f"ds_read_b32 v{96+e}, v{ib+e}")
        a("s_waitcnt lgkmcnt(0)")
        for k in range(4):
            a(f"v_cvt_pk_bf16_f32 v{108+k}, v{96+2*k}, v{97+2*k}")
            a(f"v_cvt_pk_bf16_f32 v{112+k}, v{97+2*k}, v{98+2*k}")
        a(f"buffer_store_dwordx4 v[108:111], v{voff}, s[52:55], s23 offen WT")
        a(f"v_add_u32 v{voff+1}, 4608, v{voff}")
        a(f"buffer_store_dwordx4 v[112:115], v{voff+1}, s[52:55], s23 offen WT")
    a("v_lshlrev_b32 v50, 4, v0")
    expand(64, 50)
    a("s_cmp_eq_u32 s22, 0")
    a("s_cbranch_scc0 K1_END")
    a("v_and_b32 v52, 31, v0")
    a("v_lshlrev_b32 v52, 4, v52")
    a("v_add_u32 v52, 4096, v52")
    a("s_nop 1")
    a("s_nop 1")
    expand(74, 52)
    ST.stamp(); ST.real()
    ST.flush(22, "K1_ST")
    a.label("K1_END")
    trace_end(a, "1")
    a("s_endpgm")
    return descriptor("k1_kernel", 200)
```

```python
from gen_common import *
from gen_k1 import f2u, LOG2E, dpp_reduce
import math
T0 = 66560
K1_LDS = T0 + 9280

def gen_k1(a):
    kernel_begin(a, "k1_kernel")
    trace_begin(a, "1")
    a("s_cmp_ge_u32 s2, 512")
    a("s_cbranch_scc1 K1_END")
    a("v_lshrrev_b32 v1, 6, v0")
    a("v_and_b32 v2, 63, v0")
    a("s_nop 0")
    a("v_readfirstlane_b32 s22, v1")
    a("s_cmp_ge_u32 s2, 64")
    a("s_cbranch_scc1 K1_KGEN")
    a("s_setprio 2")
    a("s_load_dwordx2 s[4:5], s[0:1], 0")
    a("s_load_dwordx2 s[6:7], s[0:1], 120")
    a("s_lshl_b32 s40, s2, 3")
    a("s_add_u32 s40, s40, s22")
    a("s_lshl_b32 s40, s40, 2")
    a("s_mul_i32 s41, s40, 896")
    a("v_cmp_gt_u32 vcc, 56, v2")
    a("v_lshlrev_b32 v3, 4, v2")
    a("v_mov_b32 v4, 0x40000000")
    a("v_cndmask_b32 v3, v4, v3, vcc")
    a("v_mul_u32_u24 v5, 640, v2")
    a("v_mov_b32 v4, 71680")
    a("s_lshl_b32 s46, s22, 3")
    a("v_add_u32 v6, s46, v5")
    a("v_add_u32 v6, 35840, v6")
    a("s_sub_u32 s46, 56, s46")
    a("v_add_u32 v5, s46, v5")
    a("v_cndmask_b32 v5, v4, v5, vcc")
    a("v_cndmask_b32 v6, v4, v6, vcc")
    a("s_mov_b32 s48, 0x05040100")
    a("s_mov_b32 s49, 0x07060302")
    a("s_waitcnt lgkmcnt(0)")
    srd(a, 8, 4, 2048 * 896)
    for r in range(4):
        a(f"buffer_load_dwordx4 v[{8+4*r}:{11+4*r}], v3, s[8:11], s41 offen")
        if r < 3: a("s_add_u32 s41, s41, 896")
    srd(a, 12, 6, 448 * UR_STRIDE, WS_UR)
    srd(a, 16, 6, 448 * RS, WS_XT)
    XF = 24
    for r in range(4):
        a(f"s_waitcnt vmcnt({3-r})")
        b = XF + 8 * r
        for k in range(4):
            a(f"v_lshlrev_b32 v{b+2*k}, 16, v{8+4*r+k}")
            a(f"v_and_b32 v{b+2*k+1}, 0xffff0000, v{8+4*r+k}")
        t = 56 + 8 * (r % 2)
        a(f"v_pk_add_f32 v[{t}:{t+1}], v[{b}:{b+1}], v[{b+2}:{b+3}]")
        a(f"v_pk_add_f32 v[{t+2}:{t+3}], v[{b+4}:{b+5}], v[{b+6}:{b+7}]")
        a(f"v_pk_mul_f32 v[{t+4}:{t+5}], v[{b}:{b+1}], v[{b}:{b+1}]")
        a(f"v_pk_mul_f32 v[{t+6}:{t+7}], v[{b+4}:{b+5}], v[{b+4}:{b+5}]")
        a(f"v_pk_add_f32 v[{t}:{t+1}], v[{t}:{t+1}], v[{t+2}:{t+3}]")
        a(f"v_pk_fma_f32 v[{t+4}:{t+5}], v[{b+2}:{b+3}], v[{b+2}:{b+3}], v[{t+4}:{t+5}]")
        a(f"v_pk_fma_f32 v[{t+6}:{t+7}], v[{b+6}:{b+7}], v[{b+6}:{b+7}], v[{t+6}:{t+7}]")
        a(f"v_add_f32 v{72+r}, v{t}, v{t+1}")
        a(f"v_pk_add_f32 v[{t+4}:{t+5}], v[{t+4}:{t+5}], v[{t+6}:{t+7}]")
        a(f"v_add_f32 v{76+r}, v{t+4}, v{t+5}")
    for e in range(8):
        o = 80 + 2 * e
        for p in range(2):
            a(f"v_perm_b32 v{o+p}, v{8+4*(2*p+1)+e//2}, v{8+4*(2*p)+e//2}, s{48+(e&1)}")
        a(f"ds_write_b64 v6, v[{o}:{o+1}] offset:{80*e}")
    dpp_reduce(a, list(range(72, 80)))
    for r in range(8):
        a(f"v_readlane_b32 s{60+r}, v{72+r}, 63")
    a.nop(4)
    for r in range(4):
        a(f"v_writelane_b32 v56, s{60+r}, {r}")
        a(f"v_writelane_b32 v57, s{64+r}, {r}")
    a.nop(2)
    a(f"v_mul_f32 v56, 0x{f2u(1.0/448.0):08x}, v56")
    a(f"v_mul_f32 v57, 0x{f2u(1.0/448.0):08x}, v57")
    a("v_fma_f32 v57, -v56, v56, v57")
    a("v_max_f32 v57, 0, v57")
    a("v_cvt_pk_bf16_f32 v58, v57, v56")
    a("v_lshlrev_b32 v57, 16, v58")
    a("v_and_b32 v56, 0xffff0000, v58")
    a(f"v_add_f32 v57, 0x{f2u(1e-5):08x}, v57")
    a("v_cvt_pk_bf16_f32 v57, v57, v57")
    a("v_lshlrev_b32 v57, 16, v57")
    a("v_sqrt_f32 v57, v57")
    a("s_nop 0")
    a("v_cvt_pk_bf16_f32 v57, v57, v57")
    a("v_lshlrev_b32 v57, 16, v57")
    a("v_rcp_f32 v57, v57")
    a.nop(2)
    for r in range(4):
        a(f"v_readlane_b32 s{80+2*r}, v56, {r}")
        a(f"v_readlane_b32 s{60+2*r}, v57, {r}")
    a.nop(3)
    for k in range(4):
        for r in range(4):
            p = XF + 8 * r + 2 * k
            a(f"v_pk_add_f32 v[{p}:{p+1}], v[{p}:{p+1}], s[{80+2*r}:{81+2*r}] op_sel_hi:[1,0] neg_lo:[0,1] neg_hi:[0,1]")
    for r in range(4):
        for k in range(4):
            p = XF + 8 * r + 2 * k
            a(f"v_cvt_pk_bf16_f32 v{56+4*r+k}, v{p}, v{p+1}")
    for r in range(4):
        for k in range(4):
            p = XF + 8 * r + 2 * k
            a(f"v_lshlrev_b32 v{p}, 16, v{56+4*r+k}")
            a(f"v_and_b32 v{p+1}, 0xffff0000, v{56+4*r+k}")
    for k in range(4):
        for r in range(4):
            p = XF + 8 * r + 2 * k
            a(f"v_pk_mul_f32 v[{p}:{p+1}], v[{p}:{p+1}], s[{60+2*r}:{61+2*r}] op_sel_hi:[1,0]")
    for e in range(8):
        o = 96 + 2 * e
        for p in range(2):
            a(f"v_cvt_pk_bf16_f32 v{o+p}, v{XF+8*(3-2*p)+e}, v{XF+8*(2-2*p)+e}")
        a(f"ds_write_b64 v5, v[{o}:{o+1}] offset:{80*e}")
    a("v_lshrrev_b32 v5, 2, v0")
    a("v_and_b32 v6, 3, v0")
    a("v_mul_u32_u24 v7, 80, v5")
    a("v_lshl_add_u32 v7, v6, 4, v7")
    a("v_add_u32 v4, 35840, v7")
    a(f"v_mul_u32_u24 v5, {RS}, v5")
    a("v_lshl_add_u32 v5, v6, 4, v5")
    a("s_lshl_b32 s46, s2, 6")
    a("s_sub_u32 s47, 4032, s46")
    a("s_waitcnt lgkmcnt(0)")
    a("s_barrier")
    def outp(i):
        a(f"ds_read_b128 v[{8+8*i}:{11+8*i}], v7 offset:{10240*i}")
        a(f"ds_read_b128 v[{12+8*i}:{15+8*i}], v4 offset:{10240*i}")
    for i in range(3): outp(i)
    a("s_cmp_lt_u32 s22, 4")
    a("s_cbranch_scc0 K1_L3")
    outp(3)
    a("s_waitcnt lgkmcnt(0)")
    a(f"s_add_u32 s50, s47, {3*128*RS}")
    a(f"s_add_u32 s51, s46, {3*128*RS}")
    a("buffer_store_dwordx4 v[32:35], v5, s[12:15], s50 offen WT")
    a("buffer_store_dwordx4 v[36:39], v5, s[16:19], s51 offen WT")
    a.label("K1_L3")
    a("s_waitcnt lgkmcnt(0)")
    for i in range(3):
        a(f"buffer_store_dwordx4 v[{8+8*i}:{11+8*i}], v5, s[12:15], s47 offen WT")
        a(f"buffer_store_dwordx4 v[{12+8*i}:{15+8*i}], v5, s[16:19], s46 offen WT")
        if i < 2:
            a(f"s_add_u32 s47, s47, {128*RS}")
            a(f"s_add_u32 s46, s46, {128*RS}")
    trace_end(a, "1")
    a("s_endpgm")

    a.label("K1_KGEN")
    ST = Stamper(a, "1", 100); ST.real(); ST.stamp()
    a("s_load_dwordx4 s[4:7], s[0:1], 8")
    a("s_load_dwordx4 s[8:11], s[0:1], 24")
    a("s_load_dwordx4 s[12:15], s[0:1], 40")
    a("s_load_dwordx2 s[16:17], s[0:1], 56")
    a("s_load_dwordx2 s[18:19], s[0:1], 120")
    a("s_sub_u32 s3, s2, 64")
    a("v_and_b32 v1, 255, v0")
    a("v_lshlrev_b32 v9, 1, v1")
    a("s_lshl_b32 s20, s3, 9")
    a("s_lshl_b32 s21, s3, 1")
    a("v_mov_b32 v10, 0")
    a("v_lshlrev_b32 v1, 2, v1")
    a("s_waitcnt lgkmcnt(0)")
    n = 448 * 256 * 2
    for i, p in enumerate([4, 6, 8, 10, 12, 14]):
        srd(a, 24 + 4 * i, p, n)
        a(f"buffer_load_ushort v{2+i}, v9, s[{24+4*i}:{27+4*i}], s20 offen")
    srd(a, 48, 16, 896)
    a("buffer_load_ushort v8, v10, s[48:51], s21 offen")
    srd(a, 52, 18, 448 * KP_STRIDE, WS_KP)
    for i in range(4): a(f"v_mov_b32 v{52+i}, 0")
    a("v_lshlrev_b32 v50, 4, v0")
    a(f"v_add_u32 v51, {T0}, v50")
    a("ds_write_b128 v51, v[52:55]")
    a("s_cmp_lt_u32 s22, 2")
    a("s_cbranch_scc0 K1_Z2")
    a("v_cmp_gt_u32 vcc, 68, v0")
    a(f"v_mov_b32 v56, {T0+8192}")
    a("v_add_u32 v51, 8192, v51")
    a("v_cndmask_b32 v51, v56, v51, vcc")
    a("ds_write_b128 v51, v[52:55]")
    a.label("K1_Z2")
    a("s_cmp_lt_u32 s22, 5")
    a("s_cbranch_scc0 K1_NOI")
    a("v_lshlrev_b32 v50, 3, v0")
    a("v_subrev_u32 v50, 63, v50")
    a("s_movk_i32 s62, 2303")
    a(f"v_mov_b32 v63, {T0}")
    for k in range(5):
        o = 64 + 2 * k
        a(f"v_add_u32 v53, {2*k}, v50")
        a(f"v_add_u32 v54, {2*k+1}, v50")
        a("v_min_u32 v53, s62, v53")
        a("v_min_u32 v54, s62, v54")
        a("v_cvt_f32_u32 v55, v53")
        a("v_cvt_f32_u32 v56, v54")
        a("v_cvt_pk_bf16_f32 v57, v55, v56")
        a("v_lshlrev_b32 v55, 16, v57")
        a("v_and_b32 v56, 0xffff0000, v57")
        a("v_cvt_u32_f32 v55, v55")
        a("v_cvt_u32_f32 v56, v56")
        a(f"v_lshl_add_u32 v{o}, v55, 2, v63")
        a(f"v_lshl_add_u32 v{o+1}, v56, 2, v63")
    a.label("K1_NOI")
    ST.stamp()
    a("s_waitcnt vmcnt(0)")
    ST.stamp()
    for i in range(7):
        a(f"v_lshlrev_b32 v{2+i}, 16, v{2+i}")
    a(f"v_mul_f32 v8, 0x{f2u(LOG2E):08x}, v8")
    a("v_exp_f32 v8, v8")
    a("s_nop 0")
    a("v_cvt_pk_bf16_f32 v8, v8, v8")
    a("v_lshlrev_b32 v8, 16, v8")
    a("v_mul_f32 v10, v8, v2")
    a("v_mul_f32 v11, v8, v3")
    a("v_mul_f32 v4, v8, v4")
    a("v_mul_f32 v5, v8, v5")
    cmul(a, 30, 6, 4)
    def E(dst, p, conj=False):
        a(f"v_mul_f32 v46, 0x{f2u(p*LOG2E):08x}, v10")
        a(f"v_mul_f32 v47, 0x{f2u(p/(2*math.pi)):08x}, v11")
        a("v_exp_f32 v46, v46")
        a("v_fract_f32 v47, v47")
        a("v_cos_f32 v48, v47")
        a("v_sin_f32 v49, v47")
        a("s_nop 0")
        a(f"v_mul_f32 v{dst}, v46, v48")
        a(f"v_mul_f32_e64 v{dst+1}, -v46, v49" if conj else f"v_mul_f32 v{dst+1}, v46, v49")
    rot = [42, 43, 44, 45]; cnt = [0]
    def put(src, addr):
        r = rot[cnt[0] % 4]; cnt[0] += 1
        a(f"v_cvt_pk_bf16_f32 v{r}, v{src}, v{src+1}")
        a(f"ds_write_b32 v1, v{r} offset:{addr}")
    Y0 = 48 * 1040
    def cmul_ip(z, w, t):
        cmul(a, t, z, w)
        a(f"v_mov_b32 v{z}, v{t}"); a(f"v_mov_b32 v{z+1}, v{t+1}")
    def putv(src, areg, off, r):
        a(f"v_cvt_pk_bf16_f32 v{r}, v{src}, v{src+1}")
        a(f"ds_write_b32 v{areg}, v{r} offset:{off}")
    E(28, 128)
    a("s_cmp_ge_u32 s22, 4")
    a("s_cbranch_scc1 K1_PB")
    E(12, 1); E(26, 8, conj=True)
    cmul(a, 32, 30, 28)
    cmul(a, 14, 26, 26)
    a("v_mov_b32 v34, 1.0"); a("v_mov_b32 v35, 0")
    a("v_mov_b32 v36, v26"); a("v_mov_b32 v37, v27")
    a("v_mov_b32 v16, v1")
    a(f"v_add_u32 v17, {Y0}, v1")
    a("s_mov_b32 s24, 8")
    a.label("K1_LA")
    putv(30, 16, 0, 42); putv(32, 16, 8 * 1040, 43); putv(34, 17, 0, 44); putv(36, 17, 1040, 45)
    cmul(a, 18, 30, 12); cmul(a, 20, 32, 12); cmul(a, 22, 34, 14); cmul(a, 24, 36, 14)
    a("v_add_u32 v16, 1040, v16")
    a("v_add_u32 v17, 2080, v17")
    for z, t in ((30, 18), (32, 20), (34, 22), (36, 24)):
        a(f"v_mov_b32 v{z}, v{t}"); a(f"v_mov_b32 v{z+1}, v{t+1}")
    a("s_sub_u32 s24, s24, 1")
    a("s_cmp_lg_u32 s24, 0")
    a("s_cbranch_scc1 K1_LA")
    a("s_branch K1_PD")
    a.label("K1_PB")
    E(14, 2); E(18, 4); E(20, 256); E(22, 512); E(24, 1024)
    cmul(a, 32, 30, 20)
    cmul(a, 34, 32, 28)
    cmul(a, 36, 30, 22)
    cmul(a, 38, 30, 24)
    a(f"v_add_u32 v16, {16*1040}, v1")
    a(f"v_add_u32 v17, {32*1040}, v1")
    a("s_mov_b32 s24, 4")
    a.label("K1_LB")
    putv(32, 16, 0, 42); putv(34, 16, 4 * 1040, 43); putv(36, 16, 8 * 1040, 44)
    cmul(a, 40, 36, 18)
    putv(38, 17, 0, 45)
    putv(40, 16, 12 * 1040, 42)
    cmul(a, 20, 32, 14); cmul(a, 22, 34, 14); cmul(a, 24, 36, 28); cmul(a, 26, 38, 28)
    a(f"v_cvt_pk_bf16_f32 v43, v26, v27")
    a(f"ds_write_b32 v17, v43 offset:1040")
    cmul(a, 38, 26, 28)
    a("v_add_u32 v16, 1040, v16")
    a("v_add_u32 v17, 2080, v17")
    for z, t in ((32, 20), (34, 22), (36, 24)):
        a(f"v_mov_b32 v{z}, v{t}"); a(f"v_mov_b32 v{z+1}, v{t+1}")
    a("s_sub_u32 s24, s24, 1")
    a("s_cmp_lg_u32 s24, 0")
    a("s_cbranch_scc1 K1_LB")
    putv(38, 17, 0, 42)
    a.label("K1_PD")
    ST.stamp()
    a("s_waitcnt lgkmcnt(0)")
    a("s_barrier")
    ST.stamp()
    a("s_cmp_ge_u32 s22, 6")
    a("s_cbranch_scc1 K1_KG_SKIP")
    a("s_cmp_ge_u32 s22, 3")
    a("s_cselect_b32 s24, 3, 0")
    a("s_cselect_b32 s25, 512, 0")
    a("s_sub_u32 s24, s22, s24")
    a("v_and_b32 v51, 15, v0")
    a("v_bfe_u32 v52, v0, 4, 2")
    a("v_mul_u32_u24 v53, 1040, v51")
    a("v_lshl_add_u32 v53, v52, 4, v53")
    a("v_add_u32 v53, s25, v53")
    a("s_mul_i32 s23, s24, 16640")
    a("v_add_u32 v54, s23, v53")
    a(f"v_add_u32 v55, {Y0}, v53")
    for k in range(8):
        a(f"ds_read_b128 v[{76+4*k}:{79+4*k}], v54 offset:{64*k}")
        if k < 6: a(f"ds_read_b128 v[{108+4*(k%4) if False else 12+4*k}:{15+4*k}], v55 offset:{64*k}")
    a("ds_read_b128 v[36:39], v55 offset:384")
    a("ds_read_b128 v[40:43], v55 offset:448")
    a("v_cmp_gt_u32 vcc, 2, v52")
    a("s_cmp_eq_u32 s24, 0")
    a("s_cbranch_scc0 K1_T1")
    a("v_lshrrev_b32 v60, 1, v52")
    a("v_lshlrev_b32 v60, 7, v60")
    a("v_and_b32 v61, 1, v52")
    a("v_lshl_add_u32 v60, v61, 2, v60")
    a("v_mov_b32 v61, 1")
    a("s_branch K1_TD")
    a.label("K1_T1")
    a("s_cmp_eq_u32 s24, 1")
    a("s_cbranch_scc0 K1_T2")
    a("v_lshlrev_b32 v60, 7, v52")
    a("v_add_u32 v60, 256, v60")
    a("v_lshlrev_b32 v61, 2, v52")
    a("v_add_u32 v61, 504, v61")
    a("v_cndmask_b32 v60, v61, v60, vcc")
    a("v_mov_b32 v61, 128")
    a("v_mov_b32 v62, 2")
    a("v_cndmask_b32 v61, v61, v62, vcc")
    a("s_branch K1_TD")
    a.label("K1_T2")
    a("v_lshlrev_b32 v60, 9, v52")
    a("v_add_u32 v60, 1024, v60")
    a("v_mul_u32_u24 v61, 9, v52")
    a("v_add_u32 v61, 2030, v61")
    a("v_cndmask_b32 v60, v61, v60, vcc")
    a("v_mov_b32 v61, 1")
    a("v_mov_b32 v62, 128")
    a("v_cndmask_b32 v61, v61, v62, vcc")
    a.label("K1_TD")
    a("v_lshl_add_u32 v60, v51, 3, v60")
    a("v_lshlrev_b32 v60, 2, v60")
    a(f"v_add_u32 v60, {T0}, v60")
    a("v_lshlrev_b32 v61, 2, v61")
    a("s_waitcnt lgkmcnt(0)")
    for k in range(8):
        c = "0" if k == 0 else "v[56:59]"
        a(f"v_mfma_f32_16x16x32_bf16 v[56:59], v[{76+4*k}:{79+4*k}], v[{12+4*k}:{15+4*k}], {c}")
    a.nop(8)
    for r in range(4):
        a(f"ds_add_f32 v60, v{56+r}")
        if r < 3: a("v_add_u32 v60, v60, v61")
    a.label("K1_KG_SKIP")
    a("s_waitcnt lgkmcnt(0)")
    a("s_barrier")
    ST.stamp()
    a("s_cmp_lt_u32 s22, 5")
    a("s_cbranch_scc0 K1_END")
    a(f"s_mul_i32 s23, s3, {KP_STRIDE}")
    for e in range(9):
        a(f"ds_read_b32 v{76+e}, v{64+e}")
    a("v_lshlrev_b32 v50, 4, v0")
    a("v_cmp_gt_u32 vcc, 288, v0")
    a("v_mov_b32 v51, 0x40000000")
    a("v_cndmask_b32 v50, v51, v50, vcc")
    a("v_add_u32 v51, 4608, v50")
    a("s_waitcnt lgkmcnt(0)")
    for k in range(4):
        a(f"v_cvt_pk_bf16_f32 v{88+k}, v{76+2*k}, v{77+2*k}")
        a(f"v_cvt_pk_bf16_f32 v{92+k}, v{77+2*k}, v{78+2*k}")
    a("buffer_store_dwordx4 v[88:91], v50, s[52:55], s23 offen WT")
    a("buffer_store_dwordx4 v[92:95], v51, s[52:55], s23 offen WT")
    ST.stamp(); ST.real()
    ST.flush(22, "K1_ST")
    a.label("K1_END")
    trace_end(a, "1")
    a("s_endpgm")
    return descriptor("k1_kernel", 128)
```

```python
from gen_common import *
import math, struct, os
def f2u(x): return struct.unpack("<I", struct.pack("<f", x))[0]
LOG2E = 1.4426950408889634
NST = 6
STG = 24576
PB = NST * STG
K3_LDS = PB + 8192

def gen_k3(a, fused=False):
    kernel_begin(a, "k3_kernel")
    trace_begin(a, "3")
    if fused:
        a("s_cmp_ge_u32 s2, 448")
        a("s_cbranch_scc1 K3_END")
        a("s_cmp_ge_u32 s2, 224")
        a("s_cbranch_scc1 K4_START")
    else:
        a("s_cmp_ge_u32 s2, 224")
        a("s_cbranch_scc1 K3_END")
    ST = Stamper(a, "3"); ST.real(); ST.stamp()
    a("s_load_dwordx4 s[4:7], s[0:1], 80")
    a("s_load_dwordx2 s[8:9], s[0:1], 120")
    a("v_lshrrev_b32 v1, 6, v0")
    a("v_and_b32 v2, 63, v0")
    a("s_and_b32 s10, s2, 7")
    a("s_lshr_b32 s11, s2, 3")
    a("v_readfirstlane_b32 s3, v1")
    a("s_mul_i32 s12, s11, 37")
    a("s_lshr_b32 s12, s12, 8")
    a("s_mul_i32 s13, s12, 7")
    a("s_sub_u32 s11, s11, s13")
    a("s_and_b32 s13, s10, 1")
    a("s_mul_i32 s13, s13, 7")
    a("s_add_u32 s11, s11, s13")
    a("s_lshr_b32 s10, s10, 1")
    a("s_lshl_b32 s10, s10, 2")
    a("s_add_u32 s10, s10, s12")
    a("s_and_b32 s14, s3, 3")
    a("s_lshr_b32 s15, s3, 2")
    a("v_lshrrev_b32 v3, 4, v2")
    a("v_bfe_u32 v4, v2, 2, 2")
    a("v_xor_b32 v4, v4, v3")
    a("v_and_b32 v5, 3, v2")
    a("v_lshl_add_u32 v4, v4, 2, v5")
    a("v_lshlrev_b32 v4, 4, v4")
    a("v_mul_u32_u24 v5, 3584, v3")
    a("v_add_u32 v5, v5, v4")
    a(f"v_mul_u32_u24 v6, {RS}, v3")
    a("v_add_u32 v6, v6, v4")
    a("s_lshl_b32 s36, s3, 2")
    a("s_mul_i32 s37, s36, 3584")
    a("s_lshl_b32 s38, s11, 8")
    a("s_add_u32 s37, s37, s38")
    a(f"s_mul_i32 s39, s36, {RS}")
    a("s_lshl_b32 s38, s10, 8")
    a("s_add_u32 s39, s39, s38")
    a("s_lshl_b32 s40, s3, 10")
    a("v_lshrrev_b32 v7, 5, v2")
    a("v_lshlrev_b32 v8, 4, v7")
    a("s_lshl_b32 s41, s11, 9")
    a("s_lshl_b32 s42, s14, 7")
    a("s_add_u32 s41, s41, s42")
    a("s_add_u32 s42, s41, 7168")
    CS = 160
    def dma(c):
        st = (c % NST) * STG
        a(f"s_add_u32 s43, s40, {st}")
        a("s_mov_b32 m0, s43")
        a("s_add_u32 s43, s43, 8192")
        a("buffer_load_dwordx4 v5, s[16:19], s37 offen lds")
        a("s_mov_b32 m0, s43")
        a("s_add_u32 s43, s43, 8192")
        a("buffer_load_dwordx4 v5, s[20:23], s37 offen lds")
        a("s_mov_b32 m0, s43")
        a(f"s_add_u32 s37, s37, {32*3584}")
        a("buffer_load_dwordx4 v6, s[24:27], s39 offen lds")
        a(f"s_add_u32 s39, s39, {32*RS}")
    a("v_lshrrev_b32 v9, 4, v2")
    a("v_bfe_u32 v10, v2, 2, 2")
    a("v_and_b32 v11, 3, v2")
    a("v_lshrrev_b32 v12, 1, v9")
    a("v_lshl_add_u32 v12, v12, 3, v10")
    a("v_lshlrev_b32 v12, 8, v12")
    a("v_and_b32 v9, 1, v9")
    a("v_lshl_add_u32 v12, v9, 5, v12")
    a("v_lshl_add_u32 v12, v11, 3, v12")
    AD = 16
    a("v_xor_b32 v13, s14, v10")
    a(f"v_lshl_add_u32 v{AD}, v13, 6, v12")
    a("s_and_b32 s44, s14, 1")
    a("s_lshl_b32 s45, s15, 1")
    a("s_add_u32 s46, s45, s44")
    a("s_xor_b32 s47, s46, 1")
    a("v_xor_b32 v13, s46, v10")
    a(f"v_lshl_add_u32 v{AD+1}, v13, 6, v12")
    a("v_xor_b32 v13, s47, v10")
    a(f"v_lshl_add_u32 v{AD+2}, v13, 6, v12")
    a(f"v_add_u32 v{AD+1}, 16384, v{AD+1}")
    a(f"v_add_u32 v{AD+2}, 16384, v{AD+2}")
    for s in (1, 2):
        for i in range(3):
            a(f"v_add_u32 v{AD+3*s+i}, {2*STG*s}, v{AD+i}")
    a("v_lshrrev_b32 v9, 4, v0")
    a("v_bfe_u32 v10, v0, 2, 2")
    a("v_and_b32 v11, 3, v9")
    a("v_xor_b32 v10, v10, v11")
    a("v_and_b32 v11, 3, v0")
    a("v_lshl_add_u32 v10, v10, 2, v11")
    a("v_lshlrev_b32 v10, 4, v10")
    a("v_lshl_add_u32 v10, v9, 8, v10")
    a("v_add_u32 v192, 16384, v10")
    a(f"v_add_u32 v193, {16384+2*STG}, v10")
    a(f"v_add_u32 v194, {16384+4*STG}, v10")
    SA = 196
    for i in range(16): a(f"v_mov_b32 v{SA+i}, 0")
    a("s_waitcnt lgkmcnt(0)")
    if os.environ.get("FINE"): ST.stamp()
    srd(a, 16, 4, 448 * 3584)
    srd(a, 20, 6, 448 * 3584)
    srd(a, 24, 8, 448 * RS, WS_HT)
    srd(a, 28, 8, 3584 * 4, WS_CS)
    srd(a, 32, 8, 224 * AC, WS_ACT)
    dma(0); dma(1)
    if os.environ.get("FINE"): ST.stamp()
    ACC = 32
    FR = 96
    LG = Lgkm(a)
    def rd_piece(c, ks, p, i):
        st = c % NST
        base = AD + 3 * (st // 2)
        off = (st % 2) * STG + ks * 16 * 256
        f = FR + 16 * p
        if i == 4:
            a(f"ds_read_b128 v[{212+4*(c%2)}:{215+4*(c%2)}], v{192 + st // 2} offset:{(st % 2) * STG}")
            LG.issue(("S", c)); return
        ar, o2 = ((base, 0), (base, 8192), (base + 1, 0), (base + 2, 0))[i]
        a(f"ds_read_b64_tr_b16 v[{f+4*i}:{f+4*i+1}], v{ar} offset:{off+o2}")
        a(f"ds_read_b64_tr_b16 v[{f+4*i+2}:{f+4*i+3}], v{ar} offset:{off+o2+1024}")
        LG.issue((c, ks, i, 0)); LG.issue((c, ks, i, 1))
    def mm(c, ks, first, stat, nxt):
        p = ks
        f = FR + 16 * p
        n = 0
        for s in range(2):
            for g in range(2):
                need = [(c, ks, g, 0), (c, ks, g, 1), (c, ks, 2 + s, 0), (c, ks, 2 + s, 1)]
                if stat is not None: need.append(("S", stat[2]))
                LG.need(need)
                d = ACC + 32 * s + 16 * g
                cc = "0" if first else f"v[{d}:{d+15}]"
                a(f"v_mfma_f32_32x32x16_bf16 v[{d}:{d+15}], v[{f+4*g}:{f+4*g+3}], v[{f+8+4*s}:{f+8+4*s+3}], {cc}")
                if nxt is not None:
                    for i in nxt[3][n]: rd_piece(nxt[0], nxt[1], nxt[2], i)
                if stat is not None:
                    raw, els, _ = stat
                    for e in els[n]:
                        t = 220 + (e % 4)
                        k = e // 2
                        if e % 2 == 0: a(f"v_lshlrev_b32 v{t}, 16, v{raw+k}")
                        else: a(f"v_and_b32 v{t}, 0xffff0000, v{raw+k}")
                        a(f"v_add_f32 v{SA+e}, v{SA+e}, v{t}")
                        a(f"v_fmac_f32 v{SA+8+e}, v{t}, v{t}")
                n += 1
    NC = 14
    def dma_state_save(): return None
    a("s_cmp_ge_u32 s3, 4")
    a("s_cselect_b64 vcc, -1, 0")
    def cs_loads():
        for q in range(4):
            a(f"buffer_load_dwordx4 v[{CS+4*q}:{CS+4*q+3}], v8, s[28:31], s41 offen offset:{32*q}")
            a(f"buffer_load_dwordx4 v[{CS+16+4*q}:{CS+16+4*q+3}], v8, s[28:31], s42 offen offset:{32*q}")
    sched = {0: [2, 3], 1: [4, 5], 2: [6, 7]}
    for c in range(3, NC): sched[c] = [c + 5] if c + 5 < NC else []
    issued = [0, 1]
    a("s_waitcnt vmcnt(3)")
    a("s_barrier")
    ST.stamp()
    for i in (0, 2, 4, 1, 3): rd_piece(0, 0, 0, i)
    def prereduce():
        a("s_nop 1")
        for i in range(8): a(f"v_permlane32_swap_b32 v{SA+i}, v{SA+8+i}")
        a("s_nop 1")
        for i in range(8): a(f"v_add_f32 v{SA+i}, v{SA+i}, v{SA+8+i}")
        a("s_nop 1")
        for i in range(4): a(f"v_permlane16_swap_b32 v{SA+i}, v{SA+4+i}")
        a("s_nop 1")
        for i in range(4): a(f"v_add_f32 v{SA+i}, v{SA+i}, v{SA+4+i}")
        a("v_and_b32 v10, 15, v2")
        a("v_lshrrev_b32 v11, 4, v2")
        a("v_lshlrev_b32 v10, 5, v10")
        a("v_and_b32 v12, 1, v11")
        a("v_lshl_add_u32 v10, v12, 4, v10")
        a("v_lshrrev_b32 v11, 1, v11")
        a("v_lshl_add_u32 v10, v11, 9, v10")
        a(f"s_add_u32 s49, s40, {PB}")
        a("v_add_u32 v10, s49, v10")
        a(f"ds_write_b128 v10, v[{SA}:{SA+3}]")
        a("v_and_b32 v15, 31, v2")
        a("s_lshl_b32 s49, s46, 7")
        a(f"s_add_u32 s49, s49, {PB}")
        a("v_lshlrev_b32 v28, 2, v15")
        a("v_add_u32 v28, s49, v28")
        a("s_lshl_b32 s49, s47, 7")
        a(f"s_add_u32 s49, s49, {PB}")
        a("v_lshlrev_b32 v29, 2, v15")
        a("v_add_u32 v29, s49, v29")
    if os.environ.get("TWICE"):
        a("s_mov_b32 s90, 2")
        a.label("K3_AGAIN")
    for c in range(NC):
        raw = 212 + 4 * (c % 2)
        if c + 1 < NC:
            nw = 3 * (len(issued) - 1 - issued.index(c + 1))
            a(f"s_cbranch_vccz K3_BB{c}")
            a(f"s_waitcnt vmcnt({nw})")
            a("s_barrier")
            a.label(f"K3_BB{c}")
            mm(c, 0, c == 0, (raw, [[0], [1], [2], [3]], c), (c, 1, 1, [[0], [2], [1], [3]]))
            a(f"s_cbranch_vccnz K3_BA{c}")
            a(f"s_waitcnt vmcnt({nw})")
            a("s_barrier")
            a.label(f"K3_BA{c}")
            for k in sched[c]:
                dma(k); issued.append(k)
            if c + 1 == NC - 1: cs_loads()
            mm(c, 1, False, (raw, [[4], [5], [6], [7]], c), (c + 1, 0, 0, [[0, 4], [2], [1], [3]]))
        else:
            mm(c, 0, False, (raw, [[0, 1], [2, 3], [4, 5], [6, 7]], c), (c, 1, 1, [[0], [2], [1], [3]]))
            prereduce()
            a("s_waitcnt lgkmcnt(0)"); LG.q = []
            a("s_barrier")
            f = FR + 16
            n = 0
            for s_ in range(2):
                for g in range(2):
                    d = ACC + 32 * s_ + 16 * g
                    a(f"v_mfma_f32_32x32x16_bf16 v[{d}:{d+15}], v[{f+4*g}:{f+4*g+3}], v[{f+8+4*s_}:{f+8+4*s_+3}], v[{d}:{d+15}]")
                    sl, half = n // 2, n % 2
                    for w in range(4 * half, 4 * half + 4):
                        a(f"ds_read_b32 v{196+16*sl+2*w}, v{28+sl} offset:{1024*w}")
                        a(f"ds_read_b32 v{197+16*sl+2*w}, v{28+sl} offset:{1024*w+512}")
                    n += 1
        if c in (0, 6): ST.stamp()
    ST.stamp()
    if os.environ.get("TWICE"):
        a("s_sub_u32 s90, s90, 1")
        a("s_cmp_lg_u32 s90, 0")
        a("s_cbranch_scc1 K3_AGAIN")
    a("s_waitcnt lgkmcnt(0)")
    for s_ in range(2):
        b = 196 + 16 * s_
        for st in (8, 4, 2):
            for i in range(0, st, 2):
                a(f"v_pk_add_f32 v[{b+i}:{b+i+1}], v[{b+i}:{b+i+1}], v[{b+i+st}:{b+i+st+1}]")
        a(f"v_mov_b32 v{112+2*s_}, v{b}")
        a(f"v_mov_b32 v{113+2*s_}, v{b+1}")
    for s in range(2):
        S, Q = 112 + 2 * s, 113 + 2 * s
        M, R = 116 + 2 * s, 117 + 2 * s
        a(f"v_mul_f32 v{S}, 0x{f2u(1/448.0):08x}, v{S}")
        a(f"v_mul_f32 v{Q}, 0x{f2u(1/448.0):08x}, v{Q}")
        a(f"v_fma_f32 v{Q}, -v{S}, v{S}, v{Q}")
        a(f"v_max_f32 v{Q}, 0, v{Q}")
        a(f"v_cvt_pk_bf16_f32 v{Q}, v{Q}, v{S}")
        a(f"v_and_b32 v{M}, 0xffff0000, v{Q}")
        a(f"v_lshlrev_b32 v{Q}, 16, v{Q}")
        a(f"v_add_f32 v{Q}, 0x{f2u(1e-5):08x}, v{Q}")
        a(f"v_cvt_pk_bf16_f32 v{Q}, v{Q}, v{Q}")
        a(f"v_lshlrev_b32 v{Q}, 16, v{Q}")
        a(f"v_sqrt_f32 v{Q}, v{Q}")
        a("s_nop 0")
        a(f"v_cvt_pk_bf16_f32 v{Q}, v{Q}, v{Q}")
        a(f"v_lshlrev_b32 v{Q}, 16, v{Q}")
        a(f"v_rcp_f32 v{R}, v{Q}")
        a("s_nop 0")
        a(f"v_sub_f32 v{M}, 0, v{M}")
    ST.stamp()
    c0 = -2.0 * math.sqrt(2 / math.pi) * LOG2E
    c1 = c0 * 0.044715
    a(f"s_mov_b32 s50, 0x{f2u(c0):08x}"); a(f"s_mov_b32 s51, 0x{f2u(c0):08x}")
    a(f"s_mov_b32 s52, 0x{f2u(c1):08x}"); a(f"s_mov_b32 s53, 0x{f2u(c1):08x}")
    a("s_mov_b32 s54, 1.0"); a("s_mov_b32 s55, 1.0")
    a("s_lshl_b32 s56, s11, 4")
    a("s_lshl_b32 s57, s14, 2")
    a("s_add_u32 s56, s56, s57")
    a(f"s_mul_i32 s56, s56, {AC}")
    a("s_lshl_b32 s57, s10, 11")
    a("s_add_u32 s56, s56, s57")
    a("v_lshlrev_b32 v28, 4, v15")
    a(f"v_mul_u32_u24 v29, {AC}, v7")
    a("v_add_u32 v28, v28, v29")
    a("s_waitcnt vmcnt(0)")
    T = 120
    for s in range(2):
        M, R = 116 + 2 * s, 117 + 2 * s
        a(f"s_lshl_b32 s58, s{46+s}, 9")
        a("s_add_u32 s58, s58, s56")
        for q in range(4):
            o = 144 + 2 * q + 8 * s
            for h in range(2):
                g = ACC + 32 * s + 4 * q + 2 * h
                u = g + 16
                cg = CS + 4 * q + 2 * h; cu = cg + 16
                t = T + 8 * h
                a(f"v_pk_fma_f32 v[{g}:{g+1}], v[{cg}:{cg+1}], v[{M}:{M+1}], v[{g}:{g+1}] op_sel_hi:[1,0,1]")
                a(f"v_pk_fma_f32 v[{u}:{u+1}], v[{cu}:{cu+1}], v[{M}:{M+1}], v[{u}:{u+1}] op_sel_hi:[1,0,1]")
                a(f"v_pk_mul_f32 v[{g}:{g+1}], v[{g}:{g+1}], v[{M}:{M+1}] op_sel:[0,1] op_sel_hi:[1,1]")
                a(f"v_pk_mul_f32 v[{u}:{u+1}], v[{u}:{u+1}], v[{M}:{M+1}] op_sel:[0,1] op_sel_hi:[1,1]")
                a(f"v_pk_mul_f32 v[{t}:{t+1}], v[{g}:{g+1}], v[{g}:{g+1}]")
                a(f"v_pk_fma_f32 v[{t}:{t+1}], v[{t}:{t+1}], s[52:53], v[{t+2}:{t+3}]") if False else None
                a(f"v_pk_mul_f32 v[{t}:{t+1}], v[{t}:{t+1}], s[52:53]")
                a(f"v_pk_add_f32 v[{t}:{t+1}], v[{t}:{t+1}], s[50:51]")
                a(f"v_pk_mul_f32 v[{t}:{t+1}], v[{t}:{t+1}], v[{g}:{g+1}]")
                a(f"v_exp_f32 v{t}, v{t}")
                a(f"v_exp_f32 v{t+1}, v{t+1}")
                a(f"v_pk_mul_f32 v[{u}:{u+1}], v[{u}:{u+1}], v[{g}:{g+1}]")
                a(f"v_pk_add_f32 v[{t}:{t+1}], v[{t}:{t+1}], s[54:55]")
                a(f"v_rcp_f32 v{t}, v{t}")
                a(f"v_rcp_f32 v{t+1}, v{t+1}")
                a("s_nop 0")
                a(f"v_pk_mul_f32 v[{u}:{u+1}], v[{u}:{u+1}], v[{t}:{t+1}]")
                a(f"v_cvt_pk_bf16_f32 v{o+h}, v{u}, v{u+1}")
        for qp in range(2):
            o = 144 + 4 * qp + 8 * s
            a("s_nop 1")
            a(f"v_permlane32_swap_b32 v{o}, v{o+2}")
            a(f"v_permlane32_swap_b32 v{o+1}, v{o+3}")
            a(f"s_add_u32 s59, s58, {qp*2*AC}")
            a("s_nop 0")
            a(f"buffer_store_dwordx4 v[{o}:{o+3}], v28, s[32:35], s59 offen WT")
    if fused:
        a("s_load_dwordx2 s[4:5], s[0:1], 112")
        a("s_waitcnt vmcnt(0)")
        a("s_barrier")
        a("v_cmp_eq_u32 vcc, 0, v0")
        a("s_and_saveexec_b64 s[8:9], vcc")
        a("s_cbranch_execz K3_END")
        a("s_lshl_b32 s10, s10, 4")
        a("v_mov_b32 v1, s10")
        a("v_mov_b32 v2, 1")
        a("s_waitcnt lgkmcnt(0)")
        a("global_atomic_add v1, v2, s[4:5] sc1")
    ST.stamp(); ST.real()
    ST.flush(3, "K3_ST")
    a.label("K3_END")
    trace_end(a, "3")
    a("s_endpgm")
    if fused:
        import gen_k4
        gen_k4.gen_k4(a, fused=True)
    return descriptor("k3_kernel", 232)
```

```python
from gen_common import *
PST = 64 * 272
NST = 4
STG = 32768
HT0 = NST * STG
K4_LDS = HT0 + 8192

def gen_k4(a, fused=False):
    if fused:
        a.label("K4_START")
        a("s_sub_u32 s2, s2, 224")
        a("s_load_dwordx2 s[50:51], s[0:1], 112")
    else:
        kernel_begin(a, "k4_kernel")
        trace_begin(a, "4")
        a("s_cmp_ge_u32 s2, 224")
        a("s_cbranch_scc1 K4_END")
    ST = Stamper(a, "4", 0); ST.real(); ST.stamp()
    a("s_load_dwordx4 s[4:7], s[0:1], 96")
    a("s_load_dwordx2 s[8:9], s[0:1], 120")
    a("v_lshrrev_b32 v1, 6, v0")
    a("v_and_b32 v2, 63, v0")
    a("s_and_b32 s10, s2, 7")
    a("s_lshr_b32 s11, s2, 3")
    a("v_readfirstlane_b32 s3, v1")
    a("s_mul_i32 s12, s11, 37")
    a("s_lshr_b32 s12, s12, 8")
    a("s_mul_i32 s13, s12, 7")
    a("s_sub_u32 s11, s11, s13")
    a("s_lshl_b32 s10, s10, 2")
    a("s_add_u32 s10, s10, s12")
    a("s_lshr_b32 s14, s3, 1")
    a("s_and_b32 s15, s3, 1")
    a("v_lshlrev_b32 v3, 4, v2")
    a("v_lshrrev_b32 v4, 3, v2")
    a("v_bfe_u32 v5, v2, 2, 1")
    a("v_bfe_u32 v6, v2, 4, 1")
    a("v_xor_b32 v5, v5, v6")
    a("v_and_b32 v6, 3, v2")
    a("v_lshl_add_u32 v5, v5, 2, v6")
    a("v_lshlrev_b32 v5, 4, v5")
    a("v_mul_u32_u24 v6, 896, v4")
    a("v_add_u32 v5, v5, v6")
    a("v_and_b32 v6, 7, v2")
    a("v_lshlrev_b32 v6, 4, v6")
    a(f"v_mul_u32_u24 v7, {RS}, v4")
    a("v_add_u32 v6, v6, v7")
    a("s_cmp_eq_u32 s15, 0")
    a("s_cselect_b64 vcc, -1, 0")
    a("v_cndmask_b32 v3, v5, v3, vcc")
    a("s_mul_i32 s38, s14, 56")
    a(f"s_mul_i32 s38, s38, {AC}")
    a("s_lshl_b32 s39, s10, 10")
    a("s_add_u32 s38, s38, s39")
    a("s_mul_i32 s39, s14, 401408")
    a("s_lshl_b32 s40, s11, 7")
    a("s_add_u32 s39, s39, s40")
    a("s_cmp_eq_u32 s15, 0")
    a("s_cselect_b32 s38, s38, s39")
    a(f"s_movk_i32 s42, {8*896}")
    a(f"s_cselect_b32 s39, {AC}, s42")
    a("s_lshl_b32 s40, s14, 13")
    a("s_lshl_b32 s41, s15, 12")
    a("s_add_u32 s41, s41, s40")
    a("v_lshrrev_b32 v9, 4, v2")
    a("v_bfe_u32 v10, v2, 2, 2")
    a("v_and_b32 v11, 3, v2")
    a("v_lshrrev_b32 v12, 1, v9")
    a("v_lshl_add_u32 v12, v12, 3, v10")
    a("v_lshlrev_b32 v12, 7, v12")
    a("v_and_b32 v9, 1, v9")
    a("v_lshl_add_u32 v12, v9, 5, v12")
    a("v_lshl_add_u32 v12, v11, 3, v12")
    a("v_lshrrev_b32 v13, 1, v10")
    a("v_lshl_add_u32 v16, v13, 6, v12")
    a("v_xor_b32 v13, 1, v13")
    a("v_lshl_add_u32 v17, v13, 6, v12")
    a("s_add_u32 s44, s40, 4096")
    a("v_add_u32 v16, s44, v16")
    a("v_add_u32 v17, s44, v17")
    a("v_lshrrev_b32 v7, 5, v2")
    a("v_and_b32 v15, 31, v2")
    a("v_lshlrev_b32 v18, 4, v15")
    a("v_lshl_add_u32 v18, v7, 10, v18")
    a("s_lshl_b32 s44, s15, 9")
    a("s_add_u32 s44, s44, s40")
    a("v_add_u32 v18, s44, v18")
    for i in range(3): a(f"v_add_u32 v{19+i}, 65536, v{16+i}")
    a("s_lshl_b32 s36, s11, 6")
    a("s_lshl_b32 s37, s3, 3")
    a("s_add_u32 s36, s36, s37")
    a(f"s_mul_i32 s36, s36, {RS}")
    a("s_lshl_b32 s37, s10, 7")
    a("s_add_u32 s36, s36, s37")
    a("s_lshl_b32 s37, s3, 10")
    a(f"s_add_u32 s37, s37, {HT0}")
    a("s_waitcnt lgkmcnt(0)")
    srd(a, 16, 4, 1792 * 896)
    srd(a, 20, 6, 2048 * 896)
    srd(a, 24, 8, 448 * RS, WS_HT)
    srd(a, 32, 8, 224 * AC, WS_ACT)
    a("s_cmp_eq_u32 s15, 0")
    for i in range(4): a(f"s_cselect_b32 s{28+i}, s{32+i}, s{16+i}")
    def dma(c):
        st = (c % NST) * STG
        a(f"s_add_u32 s43, s41, {st}")
        for i in range(4):
            a("s_mov_b32 m0, s43")
            a("s_add_u32 s43, s43, 1024")
            a("buffer_load_dwordx4 v3, s[28:31], s38 offen sc1 lds" if fused else "buffer_load_dwordx4 v3, s[28:31], s38 offen lds")
            a("s_add_u32 s38, s38, s39")
    a("s_mov_b32 m0, s37")
    a("s_nop 0")
    a("buffer_load_dwordx4 v6, s[24:27], s36 offen lds")
    if fused:
        a("s_cmp_eq_u32 s15, 0")
        a("s_cbranch_scc1 K4_WAIT")
        for c in range(NST - 1): dma(c)
        a("s_barrier")
        a("s_branch K4_GO")
        a.label("K4_WAIT")
        a("s_cmp_eq_u32 s3, 0")
        a("s_cbranch_scc0 K4_W2")
        a("s_lshr_b32 s52, s10, 1")
        a("s_lshl_b32 s52, s52, 4")
        a("v_mov_b32 v30, s52")
        a.label("K4_POLL")
        a("global_load_dword v31, v30, s[50:51] sc1")
        a("s_waitcnt vmcnt(0)")
        a("v_readfirstlane_b32 s53, v31")
        a("s_nop 3")
        a("s_cmp_ge_u32 s53, 14")
        a("s_cbranch_scc1 K4_W2")
        a("s_sleep 4")
        a("s_branch K4_POLL")
        a.label("K4_W2")
        a("s_barrier")
        a("s_lshl_b32 s38, s38, 0")
        for c in range(NST - 1): dma(c)
        a.label("K4_GO")
    else:
        for c in range(NST - 1): dma(c)
    a("s_cmp_ge_u32 s3, 4")
    a("s_cselect_b64 vcc, -1, 0")
    ACC = 32
    FR = 64
    LG = Lgkm(a)
    def rd_piece(c, ks, i):
        st = c % NST
        hi = 3 if st >= 2 else 0
        off = (st % 2) * STG
        f = FR + 16 * ks
        if i < 2:
            a(f"ds_read_b64_tr_b16 v[{f+4*i}:{f+4*i+1}], v{16+hi+i} offset:{off+ks*2048}")
            a(f"ds_read_b64_tr_b16 v[{f+4*i+2}:{f+4*i+3}], v{16+hi+i} offset:{off+ks*2048+512}")
            LG.issue((c, ks, i, 0)); LG.issue((c, ks, i, 1))
        else:
            a(f"ds_read_b128 v[{f+8}:{f+11}], v{18+hi} offset:{off+ks*2048}")
            LG.issue((c, ks, 2, 0))
    def mm(c, ks, first, nxt):
        f = FR + 16 * ks
        for mt in range(2):
            LG.need([(c, ks, mt, 0), (c, ks, mt, 1), (c, ks, 2, 0)])
            d = ACC + 16 * mt
            cc = "0" if first else f"v[{d}:{d+15}]"
            a(f"v_mfma_f32_32x32x16_bf16 v[{d}:{d+15}], v[{f+4*mt}:{f+4*mt+3}], v[{f+8}:{f+11}], {cc}")
            if nxt is not None:
                for i in ((2, 0), (1,))[mt]: rd_piece(nxt[0], nxt[1], i)
    NC = 14
    a(f"s_waitcnt vmcnt({4*(NST-2)})")
    a("s_barrier")
    ST.stamp()
    for i in (2, 0, 1): rd_piece(0, 0, i)
    for c in range(NC):
        issued = min(c + NST - 2, NC - 1)
        if c + 1 < NC:
            a(f"s_cbranch_vccz K4_BB{c}")
            a(f"s_waitcnt vmcnt({4*(issued-(c+1))})")
            a("s_barrier")
            a.label(f"K4_BB{c}")
        mm(c, 0, c == 0, (c, 1))
        if c + 1 < NC:
            a(f"s_cbranch_vccnz K4_BA{c}")
            a(f"s_waitcnt vmcnt({4*(issued-(c+1))})")
            a("s_barrier")
            a.label(f"K4_BA{c}")
            if c + NST - 1 < NC: dma(c + NST - 1)
            mm(c, 1, False, (c + 1, 0))
        else:
            mm(c, 1, False, None)
    ST.stamp()
    a("s_barrier")
    ST.stamp()
    a("v_mul_u32_u24 v20, 272, v15")
    a("v_lshl_add_u32 v20, v7, 4, v20")
    a(f"s_mul_i32 s44, s14, {PST}")
    a(f"s_mul_i32 s45, s15, {32*272}")
    a("s_add_u32 s44, s44, s45")
    a("v_add_u32 v20, s44, v20")
    a.nop(12)
    for mt in range(2):
        for q in range(4):
            r = ACC + 16 * mt + 4 * q
            a(f"ds_write_b128 v20, v[{r}:{r+3}] offset:{mt*128+q*32}")
    a("v_lshrrev_b32 v21, 3, v0")
    a("v_and_b32 v22, 7, v0")
    a("v_mul_u32_u24 v23, 272, v21")
    a("v_lshl_add_u32 v23, v22, 5, v23")
    a("v_lshlrev_b32 v25, 10, v22")
    a("v_lshl_add_u32 v25, v21, 1, v25")
    a(f"v_add_u32 v25, {HT0}, v25")
    a("v_mul_u32_u24 v26, 896, v21")
    a("v_lshl_add_u32 v26, v22, 4, v26")
    a("s_mul_i32 s45, s10, 57344")
    a("s_lshl_b32 s46, s11, 7")
    a("s_add_u32 s45, s45, s46")
    for e in range(8):
        a(f"ds_read_u16 v{96+e}, v25 offset:{128*e}")
    a("s_waitcnt lgkmcnt(0)")
    a("s_barrier")
    for w in range(4):
        a(f"ds_read_b128 v[{32+8*w}:{35+8*w}], v23 offset:{PST*w}")
        a(f"ds_read_b128 v[{36+8*w}:{39+8*w}], v23 offset:{PST*w+16}")
    for e in range(8):
        a(f"v_lshlrev_b32 v{96+e}, 16, v{96+e}")
    a("s_waitcnt lgkmcnt(0)")
    for k in range(4):
        p = 32 + 2 * k
        a(f"v_pk_add_f32 v[{p}:{p+1}], v[{p}:{p+1}], v[{p+8}:{p+9}]")
        a(f"v_pk_add_f32 v[{p+16}:{p+17}], v[{p+16}:{p+17}], v[{p+24}:{p+25}]")
        a(f"v_pk_add_f32 v[{p}:{p+1}], v[{p}:{p+1}], v[{p+16}:{p+17}]")
        a(f"v_cvt_pk_bf16_f32 v104, v{p}, v{p+1}")
        a(f"v_lshlrev_b32 v{p}, 16, v104")
        a(f"v_and_b32 v{p+1}, 0xffff0000, v104")
        a(f"v_pk_add_f32 v[{p}:{p+1}], v[{p}:{p+1}], v[{96+2*k}:{97+2*k}]")
        a(f"v_cvt_pk_bf16_f32 v{108+k}, v{p}, v{p+1}")
    a("buffer_store_dwordx4 v[108:111], v26, s[20:23], s45 offen WT")
    ST.stamp(); ST.real()
    ST.flush(3, "K4_ST")
    a.label("K4_END")
    trace_end(a, "4")
    a("s_endpgm")
    return None if fused else descriptor("k4_kernel", 128)
```

```python
from gen_common import *
import os
import math, struct
def f2u(x): return struct.unpack("<I", struct.pack("<f", x))[0]
LOG2E = 1.4426950408889634
REP = int(os.environ.get('REP', 1))
KC_STRIDE = 4416
U0 = 8 * KC_STRIDE
PSTR = 8704
T0 = 66560
KPI = T0 + 9248
KA_LDS = KPI + 4672

def dpp_reduce(a, regs):
    steps = ["row_shr:1 row_mask:0xf bank_mask:0xf bound_ctrl:0", "row_shr:2 row_mask:0xf bank_mask:0xf bound_ctrl:0",
             "row_shr:4 row_mask:0xf bank_mask:0xf bound_ctrl:0", "row_shr:8 row_mask:0xf bank_mask:0xf bound_ctrl:0",
             "row_bcast:15 row_mask:0xa bank_mask:0xf", "row_bcast:31 row_mask:0xc bank_mask:0xf"]
    a.nop(2)
    for st in steps:
        for r in regs:
            a(f"v_add_f32_dpp v{r}, v{r}, v{r} {st}")
    a.nop(2)

def gen_ka(a):
    kernel_begin(a, "k1_kernel")
    trace_begin(a, "1")
    a("s_cmp_ge_u32 s2, 504")
    a("s_cbranch_scc1 K1_END")
    a("s_cmp_ge_u32 s2, 448")
    a("s_cbranch_scc1 K2_CS")
    a.label("K1_KGEN")
    ST = Stamper(a, "1", 100); ST.real(); ST.stamp()
    a("s_load_dwordx4 s[4:7], s[0:1], 8")
    a("s_load_dwordx4 s[8:11], s[0:1], 24")
    a("s_load_dwordx4 s[12:15], s[0:1], 40")
    a("s_load_dwordx2 s[16:17], s[0:1], 56")
    a("s_load_dwordx2 s[18:19], s[0:1], 120")
    a("s_load_dwordx2 s[56:57], s[0:1], 64")
    a("s_load_dwordx2 s[58:59], s[0:1], 96")
    a("s_load_dwordx2 s[60:61], s[0:1], 112")
    a("s_mov_b32 s3, s2")
    a("v_lshlrev_b32 v1, 1, v0")
    a("s_lshl_b32 s20, s3, 9")
    a("s_lshl_b32 s21, s3, 1")
    a("v_mov_b32 v9, 0")
    a("s_waitcnt lgkmcnt(0)")
    n = 448 * 256 * 2
    for i, p in enumerate([4, 6, 8, 10, 12, 14]):
        srd(a, 24 + 4 * i, p, n)
    srd(a, 48, 16, 896)
    for i in range(6):
        a(f"buffer_load_ushort v{2+i}, v1, s[{24+4*i}:{27+4*i}], s20 offen")
    a("buffer_load_ushort v8, v9, s[48:51], s21 offen")
    a("v_lshlrev_b32 v1, 2, v0")
    a("v_lshlrev_b32 v50, 3, v0")
    a("v_subrev_u32 v50, 63, v50")
    a("v_and_b32 v51, 31, v0")
    a("v_lshlrev_b32 v51, 3, v51")
    a("v_add_u32 v51, 1985, v51")
    a("v_lshrrev_b32 v53, 6, v0")
    a("s_movk_i32 s62, 2303")
    a(f"v_mov_b32 v63, {T0}")
    a("v_readfirstlane_b32 s22, v53")
    for ps, base in ((0, 50), (1, 51)):
        if ps == 1:
            a("s_cmp_eq_u32 s22, 0")
            a("s_cbranch_scc0 K1_NOP2")
        for k in range(4):
            o = 64 + 8 * ps + 2 * k
            a(f"v_add_u32 v53, {2*k}, v{base}")
            a(f"v_add_u32 v54, {2*k+1}, v{base}")
            a("v_min_u32 v53, s62, v53")
            a("v_min_u32 v54, s62, v54")
            a("v_cvt_f32_u32 v55, v53")
            a("v_cvt_f32_u32 v56, v54")
            a("v_cvt_pk_bf16_f32 v57, v55, v56")
            a("v_lshlrev_b32 v55, 16, v57")
            a("v_and_b32 v56, 0xffff0000, v57")
            a("v_cvt_u32_f32 v55, v55")
            a("v_cvt_u32_f32 v56, v56")
            a(f"v_lshl_add_u32 v{o}, v55, 2, v63")
            a(f"v_lshl_add_u32 v{o+1}, v56, 2, v63")
    a.label("K1_NOP2")
    a("v_lshlrev_b32 v52, 2, v0")
    a(f"v_add_u32 v52, {T0+4*2049}, v52")
    a("v_mov_b32 v53, 0")
    a("ds_write_b32 v52, v53")
    a("ds_write_b32 v52, v53 offset:28")
    ST.stamp()
    a("s_waitcnt vmcnt(0)")
    ST.stamp()
    for i in range(7):
        a(f"v_lshlrev_b32 v{2+i}, 16, v{2+i}")
    srd(a, 24, 18, 448 * UR_STRIDE, WS_UR)
    srd(a, 28, 18, 448 * RS, WS_XT)
    srd(a, 32, 18, 448 * RS, WS_HT)
    srd(a, 36, 56, 896)
    srd(a, 40, 58, 1792 * 896)
    a(f"v_mul_f32 v8, 0x{f2u(LOG2E):08x}, v8")
    a("v_exp_f32 v8, v8")
    a("s_nop 0")
    a("v_cvt_pk_bf16_f32 v8, v8, v8")
    a("v_lshlrev_b32 v8, 16, v8")
    a("v_mul_f32 v10, v8, v2")
    a("v_mul_f32 v11, v8, v3")
    a("v_mul_f32 v4, v8, v4")
    a("v_mul_f32 v5, v8, v5")
    cmul(a, 30, 6, 4)
    def E(dst, p, conj=False):
        a(f"v_mul_f32 v46, 0x{f2u(p*LOG2E):08x}, v10")
        a(f"v_mul_f32 v47, 0x{f2u(p/(2*math.pi)):08x}, v11")
        a("v_exp_f32 v46, v46")
        a("v_fract_f32 v47, v47")
        a("v_cos_f32 v48, v47")
        a("v_sin_f32 v49, v47")
        a("s_nop 0")
        a(f"v_mul_f32 v{dst}, v46, v48")
        if conj:
            a(f"v_mul_f32 v{dst+1}, -v46, v49") if False else a(f"v_mul_f32_e64 v{dst+1}, -v46, v49")
        else:
            a(f"v_mul_f32 v{dst+1}, v46, v49")
    E(12, 1); E(26, 8, conj=True); E(28, 128)
    ST.stamp()
    cmul(a, 14, 12, 12)
    cmul(a, 16, 14, 12)
    cmul(a, 18, 14, 14)
    cmul(a, 20, 18, 12)
    cmul(a, 22, 18, 14)
    cmul(a, 24, 18, 16)
    W = {1: 12, 2: 14, 3: 16, 4: 18, 5: 20, 6: 22, 7: 24}
    rot = [42, 43, 44, 45]
    cnt = [0]
    def put(src, addr):
        r = rot[cnt[0] % 4]; cnt[0] += 1
        a(f"v_cvt_pk_bf16_f32 v{r}, v{src}, v{src+1}")
        a(f"ds_write_b32 v1, v{r} offset:{addr}")
    Y0 = 48 * 1040
    a("v_mov_b32 v34, 1.0")
    a("v_mov_b32 v35, 0")
    put(34, Y0)
    put(26, Y0 + 1040)
    cur = 26
    for c in range(2, 16):
        nxt = 34 if cur != 34 else 36
        cmul(a, nxt, cur, 26)
        put(nxt, Y0 + 1040 * c)
        cur = nxt
    ST.stamp()
    z = 30
    tmp = [38, 40]
    tc = 0
    for h in range(17):
        if h < 2: lst = [(8 * h + e, e) for e in range(8)]
        elif h < 4: lst = [(16 + 4 * (h - 2) + r, 2 * r) for r in range(4)]
        elif h < 8: lst = [(16 + 4 * (2 + e) + (h - 4), 4 * e) for e in range(2)]
        else: lst = [(32 + h - 8, 0)]
        for row, e in lst:
            if e == 0:
                put(z, row * 1040)
            else:
                t = tmp[tc % 2]; tc += 1
                cmul(a, t, z, W[e])
                put(t, row * 1040)
        if h < 16:
            nz = 32 if z == 30 else 30
            cmul(a, nz, z, 28)
            z = nz
    ST.stamp()
    a("s_waitcnt lgkmcnt(0)")
    a("s_barrier")
    ST.stamp()
    a("s_cmp_ge_u32 s22, 3")
    a("s_cbranch_scc1 K1_KG_SKIP")
    a("v_and_b32 v51, 15, v0")
    a("v_bfe_u32 v52, v0, 4, 2")
    a("s_movk_i32 s23, 1040")
    a("v_mul_u32_u24 v53, 1040, v51")
    a("v_lshl_add_u32 v53, v52, 4, v53")
    a("s_mul_i32 s23, s22, 16640")
    a("v_add_u32 v54, s23, v53")
    a(f"v_add_u32 v55, {Y0}, v53")
    def rd(g):
        base = 96 + (g % 2) * 32
        for k in range(4):
            ks = 4 * g + k
            a(f"ds_read_b128 v[{base+8*k}:{base+8*k+3}], v54 offset:{64*ks}")
            a(f"ds_read_b128 v[{base+8*k+4}:{base+8*k+7}], v55 offset:{64*ks}")
    rd(0); rd(1)
    for g in range(4):
        a(f"s_waitcnt lgkmcnt({8 if g < 3 else 0})")
        base = 96 + (g % 2) * 32
        for k in range(4):
            c = "0" if (g == 0 and k == 0) else "v[56:59]"
            a(f"v_mfma_f32_16x16x32_bf16 v[56:59], v[{base+8*k}:{base+8*k+3}], v[{base+8*k+4}:{base+8*k+7}], {c}")
        if g < 2:
            rd(g + 2)
    a("v_cmp_gt_u32 vcc, 2, v52")
    a("s_cmp_eq_u32 s22, 0")
    a("s_cbranch_scc0 K1_T1")
    a("v_lshrrev_b32 v60, 1, v52")
    a("v_lshlrev_b32 v60, 7, v60")
    a("v_and_b32 v61, 1, v52")
    a("v_lshl_add_u32 v60, v61, 2, v60")
    a("v_mov_b32 v61, 1")
    a("s_branch K1_TD")
    a.label("K1_T1")
    a("s_cmp_eq_u32 s22, 1")
    a("s_cbranch_scc0 K1_T2")
    a("v_lshlrev_b32 v60, 7, v52")
    a("v_add_u32 v60, 256, v60")
    a("v_lshlrev_b32 v61, 2, v52")
    a("v_add_u32 v61, 504, v61")
    a("v_cndmask_b32 v60, v61, v60, vcc")
    a("v_mov_b32 v61, 128")
    a("v_cndmask_b32 v61, v61, 2, vcc") if False else None
    a("v_mov_b32 v62, 2")
    a("v_cndmask_b32 v61, v61, v62, vcc")
    a("s_branch K1_TD")
    a.label("K1_T2")
    a("v_lshlrev_b32 v60, 9, v52")
    a("v_add_u32 v60, 1024, v60")
    a("v_mul_u32_u24 v61, 9, v52")
    a("v_add_u32 v61, 2030, v61")
    a("v_cndmask_b32 v60, v61, v60, vcc")
    a("v_mov_b32 v61, 1")
    a("v_mov_b32 v62, 128")
    a("v_cndmask_b32 v61, v61, v62, vcc")
    a.label("K1_TD")
    a("v_lshl_add_u32 v60, v51, 3, v60")
    a("v_lshlrev_b32 v60, 2, v60")
    a(f"v_add_u32 v60, {T0}, v60")
    a("v_lshlrev_b32 v61, 2, v61")
    a.nop(8)
    for r in range(4):
        a(f"ds_write_b32 v60, v{56+r}")
        if r < 3: a("v_add_u32 v60, v60, v61")
    a.label("K1_KG_SKIP")
    a("s_waitcnt lgkmcnt(0)")
    a("s_barrier")
    ST.stamp()
    a("v_and_b32 v2, 63, v0")
    a("v_lshlrev_b32 v4, 4, v0")
    a(f"s_mul_i32 s62, s3, {RS}")
    a("s_lshl_b32 s63, s3, 1")
    for e in range(8):
        a(f"ds_read_b32 v{96+e}, v{64+e} offset:{T0}") if False else a(f"ds_read_b32 v{96+e}, v{64+e} offset:0")
    a("v_lshrrev_b32 v13, 3, v2")
    a("v_lshrrev_b32 v14, 1, v13")
    a("s_and_b32 s46, s22, 1")
    a("s_lshl_b32 s46, s46, 2")
    a("v_or_b32 v14, s46, v14")
    a("v_and_b32 v15, 7, v2")
    a("v_xor_b32 v14, v14, v15")
    a("v_lshlrev_b32 v14, 4, v14")
    a("v_lshl_add_u32 v14, v13, 7, v14")
    a("s_lshl_b32 s46, s22, 10")
    a(f"s_add_u32 s47, s46, {U0}")
    a("s_add_u32 s46, s46, s62")
    a("s_mov_b32 m0, s47")
    a("s_nop 0")
    a("buffer_load_dwordx4 v14, s[24:27], s46 offen lds")
    a("buffer_load_dwordx4 v[8:11], v4, s[28:31], s62 offen")
    a("v_mov_b32 v5, 0")
    a("buffer_load_ushort v12, v5, s[36:39], s63 offen")
    a("s_mul_i32 s46, s3, 3584")
    a("v_cmp_gt_u32 vcc, 224, v0")
    a("s_and_saveexec_b64 s[48:49], vcc")
    a("s_cbranch_execz K2_NOT")
    a("buffer_load_dwordx4 v[128:131], v4, s[40:43], s46 offen")
    a.label("K2_NOT")
    a("s_mov_b64 exec, -1")
    a("v_mov_b32 v16, 0"); a("v_mov_b32 v17, 0"); a("v_mov_b32 v18, 0"); a("v_mov_b32 v19, 0")
    a(f"ds_write_b128 v4, v[16:19] offset:{U0+4096}")
    a(f"ds_write_b128 v4, v[16:19] offset:{U0+4096+4096}")
    a("s_waitcnt lgkmcnt(2)")
    for k in range(4):
        a(f"v_cvt_pk_bf16_f32 v{104+k}, v{96+2*k}, v{97+2*k}")
    a(f"v_add_u32 v20, {KPI}, v4")
    a("ds_write_b128 v20, v[104:107]")
    a("s_cmp_eq_u32 s22, 0")
    a("s_cbranch_scc0 KA_NP2")
    for e in range(8):
        a(f"ds_read_b32 v{96+e}, v{72+e}")
    a("v_and_b32 v21, 31, v0")
    a("v_lshlrev_b32 v21, 4, v21")
    a(f"v_add_u32 v21, {KPI+4096}, v21")
    a("s_waitcnt lgkmcnt(0)")
    for k in range(4):
        a(f"v_cvt_pk_bf16_f32 v{108+k}, v{96+2*k}, v{97+2*k}")
    a("ds_write_b128 v21, v[108:111]")
    a.label("KA_NP2")
    a("s_waitcnt lgkmcnt(0)")
    a("s_barrier")
    def copies(src, dst):
        a(f"ds_read_b128 v[96:99], v{src}")
        a(f"ds_read_b128 v[100:103], v{src} offset:16")
        a("s_waitcnt lgkmcnt(0)")
        for i in range(1, 8): a(f"v_mov_b32 v{104+i-1}, v{96+i}")
        for i in range(6): a(f"v_alignbit_b32 v{112+i}, v{97+i}, v{96+i}, 16")
        for i in range(1, 7): a(f"v_alignbit_b32 v{120+i-1}, v{97+i}, v{96+i}, 16")
        quads = {0: 96, 2: 104, 4: 98, 6: 106, 1: 112, 3: 120, 5: 114, 7: 122}
        for rho in range(8):
            q = quads[rho]
            a(f"ds_write_b128 v{dst}, v[{q}:{q+3}] offset:{rho*KC_STRIDE}")
    copies(20, 4)
    a("s_cmp_eq_u32 s22, 0")
    a("s_cbranch_scc0 KA_NC2")
    a("v_and_b32 v21, 15, v0")
    a("v_lshlrev_b32 v21, 4, v21")
    a("v_add_u32 v22, 4096, v21")
    a(f"v_add_u32 v21, {KPI+4096}, v21")
    a("s_nop 1")
    copies(21, 22)
    a.label("KA_NC2")
    a("v_and_b32 v6, 31, v2")
    a("v_lshrrev_b32 v7, 5, v2")
    a("v_and_b32 v13, 7, v6")
    a(f"v_mul_u32_u24 v14, {KC_STRIDE}, v13")
    a("v_sub_u32 v13, v6, v13")
    a("v_lshl_add_u32 v14, v13, 1, v14")
    a("v_lshl_add_u32 v14, v7, 4, v14")
    a("v_sub_u32 v16, 31, v6")
    a("s_waitcnt vmcnt(0) lgkmcnt(0)")
    a("s_barrier")
    ST.stamp()
    ACC = 32
    AF = 64
    BF = 96
    splits = [(0, 33), (33, 66), (66, 99), (99, 132)]
    for w, (k0, k1) in enumerate(splits):
        if w < 3:
            a(f"s_cmp_eq_u32 s22, {w}")
            a(f"s_cbranch_scc0 K2_W{w+1}")
        def rdA(f): a(f"ds_read_b128 v[{AF+4*(f%8)}:{AF+4*(f%8)+3}], v14 offset:{32*f}")
        state = {"n4": None}
        def rdB(k):
            n4 = k // 4
            if state["n4"] != n4:
                state["n4"] = n4
                a(f"v_add_u32 v17, {n4}, v16")
                a("v_bfe_u32 v18, v17, 1, 3")
                a("v_xor_b32 v18, v18, v7")
                a("v_lshlrev_b32 v17, 7, v17")
                a("v_lshl_add_u32 v15, v18, 4, v17")
            ar = 15
            if k % 4:
                ar = 19 + (k % 4) - 1
                a(f"v_xor_b32 v{ar}, {32*(k%4)}, v15")
            a(f"ds_read_b128 v[{BF+4*(k%4)}:{BF+4*(k%4)+3}], v{ar} offset:{U0}")
        rdA(k0); rdA(k0 + 1)
        PF = 2
        for k in range(k0, min(k0 + PF, k1)):
            rdA(k + 2); rdB(k)
        for k in range(k0, k1):
            if k + PF < k1:
                rdA(k + PF + 2); rdB(k + PF)
                a(f"s_waitcnt lgkmcnt({2*PF})")
            else:
                a(f"s_waitcnt lgkmcnt({2*(k1-1-k)})")
            c0 = "0" if k == k0 else f"v[{ACC}:{ACC+15}]"
            c1 = "0" if k == k0 else f"v[{ACC+16}:{ACC+31}]"
            b = BF + 4 * (k % 4)
            f0 = AF + 4 * (k % 8); f1 = AF + 4 * ((k + 2) % 8)
            a(f"v_mfma_f32_32x32x16_bf16 v[{ACC}:{ACC+15}], v[{f0}:{f0+3}], v[{b}:{b+3}], {c0}")
            a(f"v_mfma_f32_32x32x16_bf16 v[{ACC+16}:{ACC+31}], v[{f1}:{f1+3}], v[{b}:{b+3}], {c1}")
        if w < 3:
            a("s_branch K2_RED")
            a.label(f"K2_W{w+1}")
    a.label("K2_RED")
    ST.stamp()
    a("s_barrier")
    ST.stamp()
    a("v_mul_u32_u24 v20, 272, v6")
    a("v_lshl_add_u32 v20, v7, 4, v20")
    a(f"s_mul_i32 s46, s22, {PSTR}")
    a("v_add_u32 v20, s46, v20")
    a.nop(12)
    for jt in range(2):
        for q in range(4):
            r = ACC + 16 * jt + 4 * q
            a(f"ds_write_b128 v20, v[{r}:{r+3}] offset:{128*jt+32*q}")
    a("v_lshrrev_b32 v21, 3, v0")
    a("v_and_b32 v22, 7, v0")
    a("v_mul_u32_u24 v21, 272, v21")
    a("v_lshl_add_u32 v21, v22, 5, v21")
    a("v_lshlrev_b32 v22, 3, v0")
    a("v_sub_u32 v22, 2040, v22")
    a("v_lshrrev_b32 v23, 6, v22")
    a("v_bfe_u32 v22, v22, 3, 3")
    a("v_bfe_u32 v24, v23, 1, 3")
    a("v_xor_b32 v22, v22, v24")
    a("v_lshlrev_b32 v22, 4, v22")
    a("v_lshl_add_u32 v22, v23, 7, v22")
    a(f"ds_read_b128 v[24:27], v22 offset:{U0}")
    a("s_waitcnt lgkmcnt(0)")
    a("s_barrier")
    for w in range(4):
        a(f"ds_read_b128 v[{64+8*w}:{67+8*w}], v21 offset:{PSTR*w}")
        a(f"ds_read_b128 v[{68+8*w}:{71+8*w}], v21 offset:{PSTR*w+16}")
    for k in range(4):
        a(f"v_and_b32 v{96+(7-(2*k+1))}, 0xffff0000, v{24+k}")
        a(f"v_lshlrev_b32 v{96+(7-2*k)}, 16, v{24+k}")
    for k in range(4):
        a(f"v_lshlrev_b32 v{104+2*k}, 16, v{8+k}")
        a(f"v_and_b32 v{105+2*k}, 0xffff0000, v{8+k}")
    a("v_lshlrev_b32 v12, 16, v12")
    for k in range(4):
        a(f"v_mul_f32 v{96+2*k}, v12, v{96+2*k}")
        a(f"v_mul_f32 v{97+2*k}, v12, v{97+2*k}")
        a(f"v_cvt_pk_bf16_f32 v{28+k}, v{96+2*k}, v{97+2*k}")
        a(f"v_lshlrev_b32 v{96+2*k}, 16, v{28+k}")
        a(f"v_and_b32 v{97+2*k}, 0xffff0000, v{28+k}")
    a("s_waitcnt lgkmcnt(0)")
    for k in range(4):
        p = 64 + 2 * k
        a(f"v_pk_add_f32 v[{p}:{p+1}], v[{p}:{p+1}], v[{p+8}:{p+9}]")
        a(f"v_pk_add_f32 v[{p+16}:{p+17}], v[{p+16}:{p+17}], v[{p+24}:{p+25}]")
        a(f"v_pk_add_f32 v[{p}:{p+1}], v[{p}:{p+1}], v[{p+16}:{p+17}]")
        a(f"v_cvt_pk_bf16_f32 v{28+k}, v{p}, v{p+1}")
        a(f"v_lshlrev_b32 v{p}, 16, v{28+k}")
        a(f"v_and_b32 v{p+1}, 0xffff0000, v{28+k}")
        a(f"v_pk_add_f32 v[{p}:{p+1}], v[{p}:{p+1}], v[{96+2*k}:{97+2*k}]")
        a(f"v_cvt_pk_bf16_f32 v{28+k}, v{p}, v{p+1}")
        a(f"v_lshlrev_b32 v{p}, 16, v{28+k}")
        a(f"v_and_b32 v{p+1}, 0xffff0000, v{28+k}")
        a(f"v_pk_add_f32 v[{p}:{p+1}], v[{p}:{p+1}], v[{104+2*k}:{105+2*k}]")
        a(f"v_cvt_pk_bf16_f32 v{28+k}, v{p}, v{p+1}")
    a("buffer_store_dwordx4 v[28:31], v4, s[32:35], s62 offen WT")
    ST.stamp(); ST.real()
    ST.flush(22, "K2_ST")
    trace_end(a, "1")
    a("s_endpgm")
    a.label("K2_CS")
    a("s_load_dwordx4 s[8:11], s[0:1], 80")
    a("s_load_dwordx2 s[6:7], s[0:1], 120")
    a("s_sub_u32 s3, s2, 448")
    a("v_and_b32 v1, 7, v0")
    a("v_lshrrev_b32 v2, 3, v0")
    a("s_mov_b32 s30, 50176")
    a("v_mul_lo_u32 v3, v2, s30")
    a("v_lshl_add_u32 v3, v1, 4, v3")
    a("s_waitcnt lgkmcnt(0)")
    a("s_cmp_ge_u32 s3, 28")
    a("s_cselect_b32 s8, s10, s8")
    a("s_cselect_b32 s9, s11, s9")
    a("s_cselect_b32 s31, 28, 0")
    a("s_sub_u32 s31, s3, s31")
    a("s_lshl_b32 s31, s31, 7")
    srd(a, 12, 8, 448 * 3584)
    srd(a, 16, 6, 3584 * 4, WS_CS)
    for r in range(14):
        a(f"buffer_load_dwordx4 v[{32+4*r}:{35+4*r}], v3, s[12:15], s31 offen")
        a("s_add_u32 s31, s31, 3584")
    for i in range(8): a(f"v_mov_b32 v{8+i}, 0")
    for r in range(14):
        a(f"s_waitcnt vmcnt({13-r})")
        for k in range(4):
            a(f"v_lshlrev_b32 v16, 16, v{32+4*r+k}")
            a(f"v_and_b32 v17, 0xffff0000, v{32+4*r+k}")
            a(f"v_pk_add_f32 v[{8+2*k}:{9+2*k}], v[{8+2*k}:{9+2*k}], v[16:17]")
    a("v_lshlrev_b32 v18, 8, v2")
    a("v_lshl_add_u32 v18, v1, 5, v18")
    a("ds_write_b128 v18, v[8:11]")
    a("ds_write_b128 v18, v[12:15] offset:16")
    a("s_waitcnt lgkmcnt(0)")
    a("s_barrier")
    a("v_cmp_gt_u32 vcc, 64, v0")
    a("s_and_saveexec_b64 s[34:35], vcc")
    a("s_cbranch_execz K1_END")
    a("v_lshlrev_b32 v18, 2, v0")
    for r in range(32):
        a(f"ds_read_b32 v{32+r}, v18 offset:{256*r}")
    a("s_waitcnt lgkmcnt(0)")
    for st in (16, 8, 4, 2, 1):
        for r in range(st):
            a(f"v_add_f32 v{32+r}, v{32+r}, v{32+r+st}")
    a("s_lshl_b32 s31, s3, 8")
    a("buffer_store_dword v32, v18, s[16:19], s31 offen")
    a.label("K1_END")
    trace_end(a, "1")
    a("s_endpgm")
    return descriptor("k1_kernel", 200)
```

```python
import sys, importlib, os
from gen_common import *
import gen_k1, gen_k2
kern = sys.argv[1] if len(sys.argv) > 1 else "1234"
out = sys.argv[2] if len(sys.argv) > 2 else f"cdna_kernels/{NAME}.s"
ref = open(f"cdna_kernels/{NAME}.s.ref").read().split("\n")
hdr = [l for l in ref if l.startswith(";") and "@launch" not in l]
a = Asm()
def fin(tag):
    f = os.environ.get("WT" + tag, os.environ.get("WT", "sc1"))
    a.lines = [l.replace(" WT", (" " + f) if f else "") for l in a.lines]
launches = []; descs = []
if "0" in kern:
    import gen_k0, gen_kc
    launches.append(f"; @launch kernel=k0_kernel grid=(128,1,1) block=(256,1,1) lds={gen_k0.K0_LDS}")
    descs.append(gen_k0.gen_k0(a))
    fin("0")
    launches.append(f"; @launch kernel=k1_kernel grid=(504,1,1) block=(256,1,1) lds={gen_kc.KA_LDS}")
    descs.append(gen_kc.gen_ka(a))
    fin("c")
if "A" in kern:
    import gen_ka
    launches.append(f"; @launch kernel=k1_kernel grid=(568,1,1) block=(256,1,1) lds={gen_ka.KA_LDS}")
    descs.append(gen_ka.gen_ka(a))
    fin("a")
if "5" in kern:
    import gen_k1b
    launches.append(f"; @launch kernel=k1_kernel grid=(512,1,1) block=(512,1,1) lds={gen_k1b.K1_LDS}")
    descs.append(gen_k1b.gen_k1(a))
    fin("1b")
if "1" in kern:
    launches.append(f"; @launch kernel=k1_kernel grid=(512,1,1) block=(256,1,1) lds={gen_k1.K1_LDS}")
    descs.append(gen_k1.gen_k1(a))
    fin("1")
if "2" in kern:
    launches.append(f"; @launch kernel=k2_kernel grid=(504,1,1) block=(256,1,1) lds={gen_k2.K2_LDS}")
    descs.append(gen_k2.gen_k2(a))
    fin("2")
if "3" in kern:
    import gen_k3
    launches.append(f"; @launch kernel=k3_kernel grid=(240,1,1) block=(512,1,1) lds={gen_k3.K3_LDS}")
    descs.append(gen_k3.gen_k3(a))
    fin("3")
if "B" in kern:
    import gen_k3, gen_k4
    launches.append(f"; @launch kernel=k3_kernel grid=(448,1,1) block=(512,1,1) lds={max(gen_k3.K3_LDS, gen_k4.K4_LDS)}")
    descs.append(gen_k3.gen_k3(a, fused=True))
    fin("3")
if "4" in kern:
    import gen_k4
    launches.append(f"; @launch kernel=k4_kernel grid=(224,1,1) block=(512,1,1) lds={gen_k4.K4_LDS}")
    descs.append(gen_k4.gen_k4(a))
    fin("4")
txt = "\n".join(hdr) + "\n" + "\n".join(launches) + "\n"
txt += '.amdgcn_target "amdgcn-amd-amdhsa--gfx950"\n.text\n' + a.text()
txt += '.section .rodata,"a"\n' + "".join(descs)
txt = txt.replace(" WT", " " + os.environ.get("WT", "sc1")).replace("offen \n", "offen\n")
open(out, "w").write(txt)
print("wrote", out, len(txt))
```

```python
from gen_common import *
import math, struct, os
def f2u(x): return struct.unpack("<I", struct.pack("<f", x))[0]
LOG2E = 1.4426950408889634
K1_LDS = 66560 + 8768

def dpp_reduce(a, regs):
    steps = ["row_shr:1 row_mask:0xf bank_mask:0xf bound_ctrl:0", "row_shr:2 row_mask:0xf bank_mask:0xf bound_ctrl:0",
             "row_shr:4 row_mask:0xf bank_mask:0xf bound_ctrl:0", "row_shr:8 row_mask:0xf bank_mask:0xf bound_ctrl:0",
             "row_bcast:15 row_mask:0xa bank_mask:0xf", "row_bcast:31 row_mask:0xc bank_mask:0xf"]
    a.nop(2)
    for st in steps:
        for r in regs:
            a(f"v_add_f32_dpp v{r}, v{r}, v{r} {st}")
    a.nop(2)

def gen_k1(a):
    kernel_begin(a, "k1_kernel")
    trace_begin(a, "1")
    a("s_cmp_ge_u32 s2, 512")
    a("s_cbranch_scc1 K1_END")
    a("s_cmp_ge_u32 s2, 64")
    a("s_cbranch_scc1 K1_KGEN")
    a(f"s_setprio {int(os.environ.get('LNPRIO', 2))}")
    a("s_load_dwordx2 s[4:5], s[0:1], 0")
    a("s_load_dwordx2 s[6:7], s[0:1], 120")
    a("v_lshrrev_b32 v1, 6, v0")
    a("v_and_b32 v2, 63, v0")
    a("s_nop 0")
    a("v_readfirstlane_b32 s3, v1")
    a("s_lshl_b32 s40, s2, 2")
    a("s_nop 2")
    a("s_add_u32 s40, s40, s3")
    a("s_lshl_b32 s40, s40, 3")
    a("s_mul_i32 s41, s40, 896")
    a("v_cmp_gt_u32 vcc, 56, v2")
    a("v_lshlrev_b32 v3, 4, v2")
    a("v_mov_b32 v4, 0x40000000")
    a("v_cndmask_b32 v3, v4, v3, vcc")
    a("s_mov_b64 s[44:45], vcc")
    a("s_waitcnt lgkmcnt(0)")
    srd(a, 8, 4, 2048 * 896)
    srd(a, 12, 6, 448 * UR_STRIDE, WS_UR)
    srd(a, 16, 6, 448 * RS, WS_XT)
    for r in range(8):
        a(f"buffer_load_dwordx4 v[{8+4*r}:{11+4*r}], v3, s[8:11], s41 offen")
        if r < 7: a("s_add_u32 s41, s41, 896")
    a("v_mul_u32_u24 v5, 640, v2")
    a("v_mov_b32 v4, 71680")
    a("s_lshl_b32 s46, s3, 4")
    a("v_add_u32 v6, s46, v5")
    a("v_add_u32 v6, 35840, v6")
    a("s_sub_u32 s46, 48, s46")
    a("v_add_u32 v5, s46, v5")
    a("v_cndmask_b32 v5, v4, v5, vcc")
    a("v_cndmask_b32 v6, v4, v6, vcc")
    a("s_mov_b32 s48, 0x05040100")
    a("s_mov_b32 s49, 0x07060302")
    XF = 40
    for r in range(8):
        a(f"s_waitcnt vmcnt({7-r})")
        b = XF + 8 * r
        for k in range(4):
            a(f"v_lshlrev_b32 v{b+2*k}, 16, v{8+4*r+k}")
            a(f"v_and_b32 v{b+2*k+1}, 0xffff0000, v{8+4*r+k}")
        t = 104 + 8 * (r % 2)
        a(f"v_pk_add_f32 v[{t}:{t+1}], v[{b}:{b+1}], v[{b+2}:{b+3}]")
        a(f"v_pk_add_f32 v[{t+2}:{t+3}], v[{b+4}:{b+5}], v[{b+6}:{b+7}]")
        a(f"v_pk_mul_f32 v[{t+4}:{t+5}], v[{b}:{b+1}], v[{b}:{b+1}]")
        a(f"v_pk_mul_f32 v[{t+6}:{t+7}], v[{b+4}:{b+5}], v[{b+4}:{b+5}]")
        a(f"v_pk_add_f32 v[{t}:{t+1}], v[{t}:{t+1}], v[{t+2}:{t+3}]")
        a(f"v_pk_fma_f32 v[{t+4}:{t+5}], v[{b+2}:{b+3}], v[{b+2}:{b+3}], v[{t+4}:{t+5}]")
        a(f"v_pk_fma_f32 v[{t+6}:{t+7}], v[{b+6}:{b+7}], v[{b+6}:{b+7}], v[{t+6}:{t+7}]")
        a(f"v_add_f32 v{120+r}, v{t}, v{t+1}")
        a(f"v_pk_add_f32 v[{t+4}:{t+5}], v[{t+4}:{t+5}], v[{t+6}:{t+7}]")
        a(f"v_add_f32 v{128+r}, v{t+4}, v{t+5}")
    for e in range(8):
        for p in range(4):
            a(f"v_perm_b32 v{168+4*e+p}, v{8+4*(2*p+1)+e//2}, v{8+4*(2*p)+e//2}, s{48+(e&1)}")
        a(f"ds_write_b128 v6, v[{168+4*e}:{171+4*e}] offset:{80*e}")
    dpp_reduce(a, list(range(120, 136)))
    for r in range(16):
        a(f"v_readlane_b32 s{60+r}, v{120+r}, 63")
    a.nop(4)
    for r in range(8):
        a(f"v_writelane_b32 v117, s{60+r}, {r}")
        a(f"v_writelane_b32 v116, s{68+r}, {r}")
    a.nop(2)
    a(f"v_mul_f32 v117, 0x{f2u(1.0/448.0):08x}, v117")
    a(f"v_mul_f32 v116, 0x{f2u(1.0/448.0):08x}, v116")
    a("v_fma_f32 v116, -v117, v117, v116")
    a("v_max_f32 v116, 0, v116")
    a("v_cvt_pk_bf16_f32 v118, v116, v117")
    a("v_lshlrev_b32 v116, 16, v118")
    a("v_and_b32 v117, 0xffff0000, v118")
    a(f"v_add_f32 v116, 0x{f2u(1e-5):08x}, v116")
    a("v_cvt_pk_bf16_f32 v116, v116, v116")
    a("v_lshlrev_b32 v116, 16, v116")
    a("v_sqrt_f32 v116, v116")
    a("s_nop 0")
    a("v_cvt_pk_bf16_f32 v116, v116, v116")
    a("v_lshlrev_b32 v116, 16, v116")
    a("v_rcp_f32 v116, v116")
    a.nop(2)
    for r in range(8):
        a(f"v_readlane_b32 s{20+2*r}, v117, {r}")
        a(f"v_readlane_b32 s{60+2*r}, v116, {r}")
    a.nop(3)
    for half in range(2):
        rows = range(4 * half, 4 * half + 4)
        for k in range(4):
            for r in rows:
                p = XF + 8 * r + 2 * k
                a(f"v_pk_add_f32 v[{p}:{p+1}], v[{p}:{p+1}], s[{20+2*r}:{21+2*r}] op_sel_hi:[1,0] neg_lo:[0,1] neg_hi:[0,1]")
        for r in rows:
            for k in range(4):
                p = XF + 8 * r + 2 * k
                a(f"v_cvt_pk_bf16_f32 v{104+4*(r%4)+k}, v{p}, v{p+1}")
        for r in rows:
            for k in range(4):
                p = XF + 8 * r + 2 * k
                a(f"v_lshlrev_b32 v{p}, 16, v{104+4*(r%4)+k}")
                a(f"v_and_b32 v{p+1}, 0xffff0000, v{104+4*(r%4)+k}")
        for k in range(4):
            for r in rows:
                p = XF + 8 * r + 2 * k
                a(f"v_pk_mul_f32 v[{p}:{p+1}], v[{p}:{p+1}], s[{60+2*r}:{61+2*r}] op_sel_hi:[1,0]")
    for e in range(8):
        for p in range(4):
            a(f"v_cvt_pk_bf16_f32 v{136+4*e+p}, v{XF+8*(7-2*p)+e}, v{XF+8*(6-2*p)+e}")
        a(f"ds_write_b128 v5, v[{136+4*e}:{139+4*e}] offset:{80*e}")
    a("v_lshrrev_b32 v5, 2, v0")
    a("v_and_b32 v6, 3, v0")
    a("v_mul_u32_u24 v7, 80, v5")
    a("v_lshl_add_u32 v7, v6, 4, v7")
    a("v_add_u32 v4, 35840, v7")
    a(f"v_mul_u32_u24 v5, {RS}, v5")
    a("v_lshl_add_u32 v5, v6, 4, v5")
    a("s_lshl_b32 s46, s2, 6")
    a("s_sub_u32 s47, 4032, s46")
    a("s_waitcnt lgkmcnt(0)")
    a("s_barrier")
    for i in range(7):
        a(f"ds_read_b128 v[{8+4*i}:{11+4*i}], v7 offset:{5120*i}")
        a(f"ds_read_b128 v[{40+4*i}:{43+4*i}], v4 offset:{5120*i}")
    for i in range(7):
        a(f"s_waitcnt lgkmcnt({13-2*i-1})")
        a(f"buffer_store_dwordx4 v[{8+4*i}:{11+4*i}], v5, s[12:15], s47 offen WT")
        a(f"buffer_store_dwordx4 v[{40+4*i}:{43+4*i}], v5, s[16:19], s46 offen WT")
        if i < 6:
            a(f"s_add_u32 s47, s47, {64*RS}")
            a(f"s_add_u32 s46, s46, {64*RS}")
    trace_end(a, "1")
    a("s_endpgm")

    a.label("K1_KGEN")
    ST = Stamper(a, "1", 100); ST.real(); ST.stamp()
    a("s_load_dwordx4 s[4:7], s[0:1], 8")
    a("s_load_dwordx4 s[8:11], s[0:1], 24")
    a("s_load_dwordx4 s[12:15], s[0:1], 40")
    a("s_load_dwordx2 s[16:17], s[0:1], 56")
    a("s_load_dwordx2 s[18:19], s[0:1], 120")
    a("s_sub_u32 s3, s2, 64")
    a("v_lshlrev_b32 v1, 1, v0")
    a("s_lshl_b32 s20, s3, 9")
    a("s_lshl_b32 s21, s3, 1")
    a("v_mov_b32 v9, 0")
    a("s_waitcnt lgkmcnt(0)")
    n = 448 * 256 * 2
    for i, p in enumerate([4, 6, 8, 10, 12, 14]):
        srd(a, 24 + 4 * i, p, n)
    srd(a, 48, 16, 896)
    srd(a, 52, 18, 448 * KP_STRIDE, WS_KP)
    for i in range(6):
        a(f"buffer_load_ushort v{2+i}, v1, s[{24+4*i}:{27+4*i}], s20 offen")
    a("buffer_load_ushort v8, v9, s[48:51], s21 offen")
    a("v_lshlrev_b32 v1, 2, v0")
    T0 = 66560
    ZS = T0 + 4 * 2190
    a("v_lshlrev_b32 v50, 3, v0")
    a("v_subrev_u32 v50, 63, v50")
    a("v_and_b32 v51, 31, v0")
    a("v_lshlrev_b32 v51, 3, v51")
    a("v_add_u32 v51, 1985, v51")
    a(f"v_mov_b32 v52, {ZS}")
    a("v_lshrrev_b32 v53, 6, v0")
    a("s_nop 0")
    a("v_readfirstlane_b32 s22, v53")
    for ps, base in ((0, 50), (1, 51)):
        if ps == 1:
            a("s_cmp_eq_u32 s22, 0")
            a("s_cbranch_scc0 K1_NOP2")
        for k in range(4):
            o = 64 + 10 * ps + 2 * k
            a(f"v_add_u32 v53, {2*k}, v{base}")
            a(f"v_add_u32 v54, {2*k+1}, v{base}")
            a("v_cvt_f32_u32 v55, v53")
            a("v_cvt_f32_u32 v56, v54")
            a("v_cvt_pk_bf16_f32 v57, v55, v56")
            a("v_lshlrev_b32 v55, 16, v57")
            a("v_and_b32 v56, 0xffff0000, v57")
            a("v_cvt_u32_f32 v55, v55")
            a("v_cvt_u32_f32 v56, v56")
            a(f"v_lshlrev_b32 v55, 2, v55")
            a(f"v_lshlrev_b32 v56, 2, v56")
            a(f"v_add_u32 v55, {T0}, v55")
            a(f"v_add_u32 v56, {T0}, v56")
            a("v_cmp_lt_u32 vcc, 2047, v53")
            a("s_nop 1")
            a(f"v_cndmask_b32 v{o}, v55, v52, vcc")
            a("v_cmp_lt_u32 vcc, 2047, v54")
            a("s_nop 1")
            a(f"v_cndmask_b32 v{o+1}, v56, v52, vcc")
    a.label("K1_NOP2")
    a("v_mov_b32 v53, 0")
    a("ds_write_b32 v52, v53")
    ST.stamp()
    a("s_waitcnt vmcnt(0)")
    ST.stamp()
    for i in range(7):
        a(f"v_lshlrev_b32 v{2+i}, 16, v{2+i}")
    a(f"v_mul_f32 v8, 0x{f2u(LOG2E):08x}, v8")
    a("v_exp_f32 v8, v8")
    a("s_nop 0")
    a("v_cvt_pk_bf16_f32 v8, v8, v8")
    a("v_lshlrev_b32 v8, 16, v8")
    a("v_mul_f32 v10, v8, v2")
    a("v_mul_f32 v11, v8, v3")
    a("v_mul_f32 v4, v8, v4")
    a("v_mul_f32 v5, v8, v5")
    cmul(a, 30, 6, 4)
    def E(dst, p, conj=False):
        a(f"v_mul_f32 v46, 0x{f2u(p*LOG2E):08x}, v10")
        a(f"v_mul_f32 v47, 0x{f2u(p/(2*math.pi)):08x}, v11")
        a("v_exp_f32 v46, v46")
        a("v_fract_f32 v47, v47")
        a("v_cos_f32 v48, v47")
        a("v_sin_f32 v49, v47")
        a("s_nop 0")
        a(f"v_mul_f32 v{dst}, v46, v48")
        if conj:
            a(f"v_mul_f32 v{dst+1}, -v46, v49") if False else a(f"v_mul_f32_e64 v{dst+1}, -v46, v49")
        else:
            a(f"v_mul_f32 v{dst+1}, v46, v49")
    E(12, 1); E(26, 8, conj=True); E(28, 128)
    cmul(a, 14, 12, 12)
    cmul(a, 16, 14, 12)
    cmul(a, 18, 14, 14)
    cmul(a, 20, 18, 12)
    cmul(a, 22, 18, 14)
    cmul(a, 24, 18, 16)
    W = {1: 12, 2: 14, 3: 16, 4: 18, 5: 20, 6: 22, 7: 24}
    rot = [42, 43, 44, 45]
    cnt = [0]
    def put(src, addr):
        r = rot[cnt[0] % 4]; cnt[0] += 1
        a(f"v_cvt_pk_bf16_f32 v{r}, v{src}, v{src+1}")
        a(f"ds_write_b32 v1, v{r} offset:{addr}")
    Y0 = 48 * 1040
    a("v_mov_b32 v34, 1.0")
    a("v_mov_b32 v35, 0")
    put(34, Y0)
    put(26, Y0 + 1040)
    cur = 26
    for c in range(2, 16):
        nxt = 34 if cur != 34 else 36
        cmul(a, nxt, cur, 26)
        put(nxt, Y0 + 1040 * c)
        cur = nxt
    z = 30
    tmp = [38, 40]
    tc = 0
    for h in range(17):
        if h < 2: lst = [(8 * h + e, e) for e in range(8)]
        elif h < 4: lst = [(16 + 4 * (h - 2) + r, 2 * r) for r in range(4)]
        elif h < 8: lst = [(16 + 4 * (2 + e) + (h - 4), 4 * e) for e in range(2)]
        else: lst = [(32 + h - 8, 0)]
        for row, e in lst:
            if e == 0:
                put(z, row * 1040)
            else:
                t = tmp[tc % 2]; tc += 1
                cmul(a, t, z, W[e])
                put(t, row * 1040)
        if h < 16:
            nz = 32 if z == 30 else 30
            cmul(a, nz, z, 28)
            z = nz
    a("s_waitcnt lgkmcnt(0)")
    a("s_barrier")
    ST.stamp()
    a("v_lshrrev_b32 v50, 6, v0")
    a("s_nop 0")
    a("v_readfirstlane_b32 s22, v50")
    a("s_nop 3")
    a("s_cmp_ge_u32 s22, 3")
    a("s_cbranch_scc1 K1_KG_SKIP")
    a("v_and_b32 v51, 15, v0")
    a("v_bfe_u32 v52, v0, 4, 2")
    a("s_movk_i32 s23, 1040")
    a("v_mul_u32_u24 v53, 1040, v51")
    a("v_lshl_add_u32 v53, v52, 4, v53")
    a("s_mul_i32 s23, s22, 16640")
    a("v_add_u32 v54, s23, v53")
    a(f"v_add_u32 v55, {Y0}, v53")
    def rd(g):
        base = 96 + (g % 2) * 32
        for k in range(4):
            ks = 4 * g + k
            a(f"ds_read_b128 v[{base+8*k}:{base+8*k+3}], v54 offset:{64*ks}")
            a(f"ds_read_b128 v[{base+8*k+4}:{base+8*k+7}], v55 offset:{64*ks}")
    rd(0); rd(1)
    for g in range(4):
        a(f"s_waitcnt lgkmcnt({8 if g < 3 else 0})")
        base = 96 + (g % 2) * 32
        for k in range(4):
            c = "0" if (g == 0 and k == 0) else "v[56:59]"
            a(f"v_mfma_f32_16x16x32_bf16 v[56:59], v[{base+8*k}:{base+8*k+3}], v[{base+8*k+4}:{base+8*k+7}], {c}")
        if g < 2:
            rd(g + 2)
    a("v_cmp_gt_u32 vcc, 2, v52")
    a("s_cmp_eq_u32 s22, 0")
    a("s_cbranch_scc0 K1_T1")
    a("v_lshrrev_b32 v60, 1, v52")
    a("v_lshlrev_b32 v60, 7, v60")
    a("v_and_b32 v61, 1, v52")
    a("v_lshl_add_u32 v60, v61, 2, v60")
    a("v_mov_b32 v61, 1")
    a("s_branch K1_TD")
    a.label("K1_T1")
    a("s_cmp_eq_u32 s22, 1")
    a("s_cbranch_scc0 K1_T2")
    a("v_lshlrev_b32 v60, 7, v52")
    a("v_add_u32 v60, 256, v60")
    a("v_lshlrev_b32 v61, 2, v52")
    a("v_add_u32 v61, 504, v61")
    a("v_cndmask_b32 v60, v61, v60, vcc")
    a("v_mov_b32 v61, 128")
    a("v_cndmask_b32 v61, v61, 2, vcc") if False else None
    a("v_mov_b32 v62, 2")
    a("v_cndmask_b32 v61, v61, v62, vcc")
    a("s_branch K1_TD")
    a.label("K1_T2")
    a("v_lshlrev_b32 v60, 9, v52")
    a("v_add_u32 v60, 1024, v60")
    a("v_lshlrev_b32 v61, 3, v52")
    a("v_add_u32 v61, 2032, v61")
    a("v_cndmask_b32 v60, v61, v60, vcc")
    a("v_mov_b32 v61, 1")
    a("v_mov_b32 v62, 128")
    a("v_cndmask_b32 v61, v61, v62, vcc")
    a.label("K1_TD")
    a("v_lshl_add_u32 v60, v51, 3, v60")
    a("v_lshlrev_b32 v60, 2, v60")
    a(f"v_add_u32 v60, {T0}, v60")
    a("v_lshlrev_b32 v61, 2, v61")
    a.nop(8)
    for r in range(4):
        a(f"ds_write_b32 v60, v{56+r}")
        if r < 3: a("v_add_u32 v60, v60, v61")
    a.label("K1_KG_SKIP")
    a("s_waitcnt lgkmcnt(0)")
    a("s_barrier")
    ST.stamp()
    a(f"s_mul_i32 s23, s3, {KP_STRIDE}")
    def expand(ib, voff):
        for e in range(8):
            a(f"ds_read_b32 v{96+e}, v{ib+e}")
        a("s_waitcnt lgkmcnt(0)")
        for k in range(4):
            a(f"v_cvt_pk_bf16_f32 v{108+k}, v{96+2*k}, v{97+2*k}")
        a(f"buffer_store_dwordx4 v[108:111], v{voff}, s[52:55], s23 offen WT")
    a("v_lshlrev_b32 v50, 4, v0")
    expand(64, 50)
    a("s_cmp_eq_u32 s22, 0")
    a("s_cbranch_scc0 K1_END")
    a("v_and_b32 v52, 31, v0")
    a("v_lshlrev_b32 v52, 4, v52")
    a("v_add_u32 v52, 4096, v52")
    a("s_nop 1")
    a("s_nop 1")
    expand(74, 52)
    ST.stamp(); ST.real()
    ST.flush(22, "K1_ST")
    a.label("K1_END")
    trace_end(a, "1")
    a("s_endpgm")
    return descriptor("k1_kernel", 200)
```

```python
from gen_common import *
KC_STRIDE = 4416
U0 = 8 * KC_STRIDE
K2_LDS = U0 + 4096 + 8192
PSTR = 8704

def gen_k2(a):
    kernel_begin(a, "k2_kernel")
    trace_begin(a, "2")
    a("s_cmp_ge_u32 s2, 504")
    a("s_cbranch_scc1 K2_END")
    a("s_load_dwordx2 s[6:7], s[0:1], 120")
    a("s_cmp_ge_u32 s2, 448")
    a("s_cbranch_scc1 K2_CS")
    ST = Stamper(a, "2", 100); ST.real(); ST.stamp()
    a("s_load_dwordx2 s[4:5], s[0:1], 64")
    a("s_load_dwordx2 s[42:43], s[0:1], 0")
    a("s_load_dwordx2 s[40:41], s[0:1], 96")
    a("v_lshrrev_b32 v1, 6, v0")
    a("v_and_b32 v2, 63, v0")
    a("s_nop 0")
    a("v_readfirstlane_b32 s3, v1")
    a("v_lshlrev_b32 v3, 4, v2")
    a("v_lshlrev_b32 v4, 4, v0")
    a("s_waitcnt lgkmcnt(0)")
    srd(a, 8, 6, 448 * KP_STRIDE, WS_KP)
    srd(a, 12, 6, 448 * UR_STRIDE, WS_UR)
    srd(a, 16, 6, 448 * RS, WS_XT)
    srd(a, 20, 6, 448 * RS, WS_HT)
    srd(a, 24, 4, 896)
    a(f"s_mul_i32 s30, s2, {KP_STRIDE}")
    a(f"s_mul_i32 s31, s2, {UR_STRIDE}")
    a(f"s_mul_i32 s32, s2, {RS}")
    a("s_lshl_b32 s33, s2, 1")
    a("buffer_load_dwordx4 v[96:99], v4, s[8:11], s30 offen")
    a("buffer_load_dwordx4 v[100:103], v4, s[8:11], s30 offen offset:16")
    a("v_and_b32 v21, 15, v0")
    a("v_lshlrev_b32 v21, 4, v21")
    a("v_add_u32 v22, 4096, v21")
    a("s_cmp_eq_u32 s3, 0")
    a("s_cbranch_scc0 K2_NK2")
    a("buffer_load_dwordx4 v[128:131], v22, s[8:11], s30 offen")
    a("buffer_load_dwordx4 v[132:135], v22, s[8:11], s30 offen offset:16")
    a.label("K2_NK2")
    a("v_lshrrev_b32 v13, 3, v2")
    a("v_lshrrev_b32 v14, 1, v13")
    a("s_and_b32 s34, s3, 1")
    a("s_lshl_b32 s34, s34, 2")
    a("v_or_b32 v14, s34, v14")
    a("v_and_b32 v15, 7, v2")
    a("v_xor_b32 v14, v14, v15")
    a("v_lshlrev_b32 v14, 4, v14")
    a("v_lshl_add_u32 v14, v13, 7, v14")
    a("s_lshl_b32 s34, s3, 10")
    a(f"s_add_u32 s35, s34, {U0}")
    a("s_add_u32 s34, s34, s31")
    a("s_mov_b32 m0, s35")
    a("s_nop 0")
    a("buffer_load_dwordx4 v14, s[12:15], s34 offen lds")
    a("buffer_load_dwordx4 v[8:11], v4, s[16:19], s32 offen")
    a("v_mov_b32 v5, 0")
    a("buffer_load_ushort v12, v5, s[24:27], s33 offen")
    srd(a, 44, 40, 1792 * 896)
    a("s_mul_i32 s50, s2, 3584")
    a("v_cmp_gt_u32 vcc, 224, v0")
    a("s_and_saveexec_b64 s[48:49], vcc")
    a("s_cbranch_execz K2_NOT")
    a("buffer_load_dwordx4 v[144:147], v4, s[44:47], s50 offen")
    a.label("K2_NOT")
    a("s_mov_b64 exec, -1")
    a("v_mov_b32 v16, 0"); a("v_mov_b32 v17, 0"); a("v_mov_b32 v18, 0"); a("v_mov_b32 v19, 0")
    a(f"ds_write_b128 v4, v[16:19] offset:{U0+4096}")
    a(f"ds_write_b128 v4, v[16:19] offset:{U0+4096+4096}")
    def copies(src, dst):
        for i in range(1, 8): a(f"v_mov_b32 v{104+i-1}, v{src+i}")
        for i in range(6): a(f"v_alignbit_b32 v{112+i}, v{src+1+i}, v{src+i}, 16")
        for i in range(1, 7): a(f"v_alignbit_b32 v{120+i-1}, v{src+1+i}, v{src+i}, 16")
        quads = {0: src, 2: 104, 4: src + 2, 6: 106, 1: 112, 3: 120, 5: 114, 7: 122}
        for rho in range(8):
            q = quads[rho]
            a(f"ds_write_b128 v{dst}, v[{q}:{q+3}] offset:{rho*KC_STRIDE}")
    a("s_cmp_eq_u32 s3, 0")
    a("s_cbranch_scc1 K2_C0")
    a("s_waitcnt vmcnt(4)")
    a("s_branch K2_C1")
    a.label("K2_C0")
    a("s_waitcnt vmcnt(4)")
    a.label("K2_C1")
    copies(96, 4)
    a("s_cmp_eq_u32 s3, 0")
    a("s_cbranch_scc0 K2_NC2")
    a("s_nop 1")
    copies(128, 22)
    a.label("K2_NC2")
    a("v_and_b32 v6, 31, v2")
    a("v_lshrrev_b32 v7, 5, v2")
    a("v_and_b32 v13, 7, v6")
    a(f"v_mul_u32_u24 v14, {KC_STRIDE}, v13")
    a("v_sub_u32 v13, v6, v13")
    a("v_lshl_add_u32 v14, v13, 1, v14")
    a("v_lshl_add_u32 v14, v7, 4, v14")
    a("v_sub_u32 v16, 31, v6")
    a("s_waitcnt vmcnt(0) lgkmcnt(0)")
    a("s_barrier")
    ST.stamp()
    ACC = 32
    AF = 64
    BF = 96
    splits = [(0, 33), (33, 66), (66, 99), (99, 132)]
    for w, (k0, k1) in enumerate(splits):
        if w < 3:
            a(f"s_cmp_eq_u32 s3, {w}")
            a(f"s_cbranch_scc0 K2_W{w+1}")
        def rdA(f): a(f"ds_read_b128 v[{AF+4*(f%8)}:{AF+4*(f%8)+3}], v14 offset:{32*f}")
        state = {"n4": None}
        def rdB(k):
            n4 = k // 4
            if state["n4"] != n4:
                state["n4"] = n4
                a(f"v_add_u32 v17, {n4}, v16")
                a("v_bfe_u32 v18, v17, 1, 3")
                a("v_xor_b32 v18, v18, v7")
                a("v_lshlrev_b32 v17, 7, v17")
                a("v_lshl_add_u32 v15, v18, 4, v17")
            ar = 15
            if k % 4:
                ar = 19 + (k % 4) - 1
                a(f"v_xor_b32 v{ar}, {32*(k%4)}, v15")
            a(f"ds_read_b128 v[{BF+4*(k%4)}:{BF+4*(k%4)+3}], v{ar} offset:{U0}")
        rdA(k0); rdA(k0 + 1)
        PF = 2
        for k in range(k0, min(k0 + PF, k1)):
            rdA(k + 2); rdB(k)
        for k in range(k0, k1):
            if k + PF < k1:
                rdA(k + PF + 2); rdB(k + PF)
                a(f"s_waitcnt lgkmcnt({2*PF})")
            else:
                a(f"s_waitcnt lgkmcnt({2*(k1-1-k)})")
            c0 = "0" if k == k0 else f"v[{ACC}:{ACC+15}]"
            c1 = "0" if k == k0 else f"v[{ACC+16}:{ACC+31}]"
            b = BF + 4 * (k % 4)
            f0 = AF + 4 * (k % 8); f1 = AF + 4 * ((k + 2) % 8)
            a(f"v_mfma_f32_32x32x16_bf16 v[{ACC}:{ACC+15}], v[{f0}:{f0+3}], v[{b}:{b+3}], {c0}")
            a(f"v_mfma_f32_32x32x16_bf16 v[{ACC+16}:{ACC+31}], v[{f1}:{f1+3}], v[{b}:{b+3}], {c1}")
        if w < 3:
            a("s_branch K2_RED")
            a.label(f"K2_W{w+1}")
    a.label("K2_RED")
    ST.stamp()
    a("s_barrier")
    ST.stamp()
    a("v_mul_u32_u24 v20, 272, v6")
    a("v_lshl_add_u32 v20, v7, 4, v20")
    a(f"s_mul_i32 s34, s3, {PSTR}")
    a("v_add_u32 v20, s34, v20")
    a.nop(12)
    for jt in range(2):
        for q in range(4):
            r = ACC + 16 * jt + 4 * q
            a(f"ds_write_b128 v20, v[{r}:{r+3}] offset:{128*jt+32*q}")
    a("v_lshrrev_b32 v21, 3, v0")
    a("v_and_b32 v22, 7, v0")
    a("v_mul_u32_u24 v21, 272, v21")
    a("v_lshl_add_u32 v21, v22, 5, v21")
    a("v_lshlrev_b32 v22, 3, v0")
    a("v_sub_u32 v22, 2040, v22")
    a("v_lshrrev_b32 v23, 6, v22")
    a("v_bfe_u32 v22, v22, 3, 3")
    a("v_bfe_u32 v24, v23, 1, 3")
    a("v_xor_b32 v22, v22, v24")
    a("v_lshlrev_b32 v22, 4, v22")
    a("v_lshl_add_u32 v22, v23, 7, v22")
    a(f"ds_read_b128 v[24:27], v22 offset:{U0}")
    a("s_waitcnt lgkmcnt(0)")
    a("s_barrier")
    for w in range(4):
        a(f"ds_read_b128 v[{64+8*w}:{67+8*w}], v21 offset:{PSTR*w}")
        a(f"ds_read_b128 v[{68+8*w}:{71+8*w}], v21 offset:{PSTR*w+16}")
    for k in range(4):
        a(f"v_and_b32 v{96+(7-(2*k+1))}, 0xffff0000, v{24+k}")
        a(f"v_lshlrev_b32 v{96+(7-2*k)}, 16, v{24+k}")
    for k in range(4):
        a(f"v_lshlrev_b32 v{104+2*k}, 16, v{8+k}")
        a(f"v_and_b32 v{105+2*k}, 0xffff0000, v{8+k}")
    a("v_lshlrev_b32 v12, 16, v12")
    for k in range(4):
        a(f"v_mul_f32 v{96+2*k}, v12, v{96+2*k}")
        a(f"v_mul_f32 v{97+2*k}, v12, v{97+2*k}")
        a(f"v_cvt_pk_bf16_f32 v{28+k}, v{96+2*k}, v{97+2*k}")
        a(f"v_lshlrev_b32 v{96+2*k}, 16, v{28+k}")
        a(f"v_and_b32 v{97+2*k}, 0xffff0000, v{28+k}")
    a("s_waitcnt lgkmcnt(0)")
    for k in range(4):
        p = 64 + 2 * k
        a(f"v_pk_add_f32 v[{p}:{p+1}], v[{p}:{p+1}], v[{p+8}:{p+9}]")
        a(f"v_pk_add_f32 v[{p+16}:{p+17}], v[{p+16}:{p+17}], v[{p+24}:{p+25}]")
        a(f"v_pk_add_f32 v[{p}:{p+1}], v[{p}:{p+1}], v[{p+16}:{p+17}]")
        a(f"v_cvt_pk_bf16_f32 v{28+k}, v{p}, v{p+1}")
        a(f"v_lshlrev_b32 v{p}, 16, v{28+k}")
        a(f"v_and_b32 v{p+1}, 0xffff0000, v{28+k}")
        a(f"v_pk_add_f32 v[{p}:{p+1}], v[{p}:{p+1}], v[{96+2*k}:{97+2*k}]")
        a(f"v_cvt_pk_bf16_f32 v{28+k}, v{p}, v{p+1}")
        a(f"v_lshlrev_b32 v{p}, 16, v{28+k}")
        a(f"v_and_b32 v{p+1}, 0xffff0000, v{28+k}")
        a(f"v_pk_add_f32 v[{p}:{p+1}], v[{p}:{p+1}], v[{104+2*k}:{105+2*k}]")
        a(f"v_cvt_pk_bf16_f32 v{28+k}, v{p}, v{p+1}")
    a("buffer_store_dwordx4 v[28:31], v4, s[20:23], s32 offen WT")
    ST.stamp(); ST.real()
    ST.flush(3, "K2_ST")
    trace_end(a, "2")
    a("s_endpgm")
    a.label("K2_CS")
    a("s_load_dwordx4 s[8:11], s[0:1], 80")
    a("s_sub_u32 s3, s2, 448")
    a("v_and_b32 v1, 7, v0")
    a("v_lshrrev_b32 v2, 3, v0")
    a("s_mov_b32 s30, 50176")
    a("v_mul_lo_u32 v3, v2, s30")
    a("v_lshl_add_u32 v3, v1, 4, v3")
    a("s_waitcnt lgkmcnt(0)")
    a("s_cmp_ge_u32 s3, 28")
    a("s_cselect_b32 s8, s10, s8")
    a("s_cselect_b32 s9, s11, s9")
    a("s_cselect_b32 s31, 28, 0")
    a("s_sub_u32 s31, s3, s31")
    a("s_lshl_b32 s31, s31, 7")
    srd(a, 12, 8, 448 * 3584)
    srd(a, 16, 6, 3584 * 4, WS_CS)
    for r in range(14):
        a(f"buffer_load_dwordx4 v[{32+4*r}:{35+4*r}], v3, s[12:15], s31 offen")
        a("s_add_u32 s31, s31, 3584")
    for i in range(8): a(f"v_mov_b32 v{8+i}, 0")
    for r in range(14):
        a(f"s_waitcnt vmcnt({13-r})")
        for k in range(4):
            a(f"v_lshlrev_b32 v16, 16, v{32+4*r+k}")
            a(f"v_and_b32 v17, 0xffff0000, v{32+4*r+k}")
            a(f"v_pk_add_f32 v[{8+2*k}:{9+2*k}], v[{8+2*k}:{9+2*k}], v[16:17]")
    a("v_lshlrev_b32 v18, 8, v2")
    a("v_lshl_add_u32 v18, v1, 5, v18")
    a("ds_write_b128 v18, v[8:11]")
    a("ds_write_b128 v18, v[12:15] offset:16")
    a("s_waitcnt lgkmcnt(0)")
    a("s_barrier")
    a("v_cmp_gt_u32 vcc, 64, v0")
    a("s_and_saveexec_b64 s[34:35], vcc")
    a("s_cbranch_execz K2_END")
    a("v_lshlrev_b32 v18, 2, v0")
    for r in range(32):
        a(f"ds_read_b32 v{32+r}, v18 offset:{256*r}")
    a("s_waitcnt lgkmcnt(0)")
    for st in (16, 8, 4, 2, 1):
        for r in range(st):
            a(f"v_add_f32 v{32+r}, v{32+r}, v{32+r+st}")
    a("s_lshl_b32 s31, s3, 8")
    a("buffer_store_dword v32, v18, s[16:19], s31 offen")
    a.label("K2_END")
    trace_end(a, "2")
    a("s_endpgm")
    return descriptor("k2_kernel", 152)
```

```python
from gen_common import *
import math, struct, os
def f2u(x): return struct.unpack("<I", struct.pack("<f", x))[0]
LOG2E = 1.4426950408889634
NST = 6
STG = 24576
PB = NST * STG
K3_LDS = PB + 8192

def gen_k3(a, fused=False):
    kernel_begin(a, "k3_kernel")
    trace_begin(a, "3")
    if fused:
        a("s_cmp_ge_u32 s2, 448")
        a("s_cbranch_scc1 K3_END")
        a("s_cmp_ge_u32 s2, 224")
        a("s_cbranch_scc1 K4_START")
    else:
        a("s_cmp_ge_u32 s2, 224")
        a("s_cbranch_scc1 K3_END")
    ST = Stamper(a, "3"); ST.real(); ST.stamp()
    a("s_load_dwordx4 s[4:7], s[0:1], 80")
    a("s_load_dwordx2 s[8:9], s[0:1], 120")
    a("v_lshrrev_b32 v1, 6, v0")
    a("v_and_b32 v2, 63, v0")
    a("s_and_b32 s10, s2, 7")
    a("s_lshr_b32 s11, s2, 3")
    a("v_readfirstlane_b32 s3, v1")
    a("s_mul_i32 s12, s11, 37")
    a("s_lshr_b32 s12, s12, 8")
    a("s_mul_i32 s13, s12, 7")
    a("s_sub_u32 s11, s11, s13")
    a("s_and_b32 s13, s10, 1")
    a("s_mul_i32 s13, s13, 7")
    a("s_add_u32 s11, s11, s13")
    a("s_lshr_b32 s10, s10, 1")
    a("s_lshl_b32 s10, s10, 2")
    a("s_add_u32 s10, s10, s12")
    a("s_and_b32 s14, s3, 3")
    a("s_lshr_b32 s15, s3, 2")
    a("v_lshrrev_b32 v3, 4, v2")
    a("v_bfe_u32 v4, v2, 2, 2")
    a("v_xor_b32 v4, v4, v3")
    a("v_and_b32 v5, 3, v2")
    a("v_lshl_add_u32 v4, v4, 2, v5")
    a("v_lshlrev_b32 v4, 4, v4")
    a("v_mul_u32_u24 v5, 3584, v3")
    a("v_add_u32 v5, v5, v4")
    a(f"v_mul_u32_u24 v6, {RS}, v3")
    a("v_add_u32 v6, v6, v4")
    a("s_lshl_b32 s36, s3, 2")
    a("s_mul_i32 s37, s36, 3584")
    a("s_lshl_b32 s38, s11, 8")
    a("s_add_u32 s37, s37, s38")
    a(f"s_mul_i32 s39, s36, {RS}")
    a("s_lshl_b32 s38, s10, 8")
    a("s_add_u32 s39, s39, s38")
    a(f"s_sub_u32 s39, s39, {32*RS}")
    a("s_lshl_b32 s40, s3, 10")
    a("v_lshrrev_b32 v7, 5, v2")
    a("v_lshlrev_b32 v8, 4, v7")
    a("s_lshl_b32 s41, s11, 9")
    a("s_lshl_b32 s42, s14, 7")
    a("s_add_u32 s41, s41, s42")
    a("s_add_u32 s42, s41, 7168")
    CS = 160
    def dma(c):
        st = (c % NST) * STG
        a(f"s_add_u32 m0, s40, {st}")
        a(f"s_add_u32 s39, s39, {32*RS}")
        a("buffer_load_dwordx4 v5, s[16:19], s37 offen lds")
        a("s_add_u32 m0, m0, 8192")
        a("s_nop 0")
        a("buffer_load_dwordx4 v5, s[20:23], s37 offen lds")
        a("s_add_u32 m0, m0, 8192")
        a(f"s_add_u32 s37, s37, {32*3584}")
        a("buffer_load_dwordx4 v6, s[24:27], s39 offen lds")
    a("v_lshrrev_b32 v9, 4, v2")
    a("v_bfe_u32 v10, v2, 2, 2")
    a("v_and_b32 v11, 3, v2")
    a("v_lshrrev_b32 v12, 1, v9")
    a("v_lshl_add_u32 v12, v12, 3, v10")
    a("v_lshlrev_b32 v12, 8, v12")
    a("v_and_b32 v9, 1, v9")
    a("v_lshl_add_u32 v12, v9, 5, v12")
    a("v_lshl_add_u32 v12, v11, 3, v12")
    AD = 16
    a("v_xor_b32 v13, s14, v10")
    a(f"v_lshl_add_u32 v{AD}, v13, 6, v12")
    a("s_and_b32 s44, s14, 1")
    a("s_lshl_b32 s45, s15, 1")
    a("s_add_u32 s46, s45, s44")
    a("s_xor_b32 s47, s46, 1")
    a("v_xor_b32 v13, s46, v10")
    a(f"v_lshl_add_u32 v{AD+1}, v13, 6, v12")
    a("v_xor_b32 v13, s47, v10")
    a(f"v_lshl_add_u32 v{AD+2}, v13, 6, v12")
    a(f"v_add_u32 v{AD+1}, 16384, v{AD+1}")
    a(f"v_add_u32 v{AD+2}, 16384, v{AD+2}")
    for s in (1, 2):
        for i in range(3):
            a(f"v_add_u32 v{AD+3*s+i}, {2*STG*s}, v{AD+i}")
    a("v_lshrrev_b32 v9, 4, v0")
    a("v_bfe_u32 v10, v0, 2, 2")
    a("v_and_b32 v11, 3, v9")
    a("v_xor_b32 v10, v10, v11")
    a("v_and_b32 v11, 3, v0")
    a("v_lshl_add_u32 v10, v10, 2, v11")
    a("v_lshlrev_b32 v10, 4, v10")
    a("v_lshl_add_u32 v10, v9, 8, v10")
    a("v_add_u32 v192, 16384, v10")
    a(f"v_add_u32 v193, {16384+2*STG}, v10")
    a(f"v_add_u32 v194, {16384+4*STG}, v10")
    SA = 196
    for i in range(16): a(f"v_mov_b32 v{SA+i}, 0")
    a("s_waitcnt lgkmcnt(0)")
    if os.environ.get("FINE"): ST.stamp()
    srd(a, 16, 4, 448 * 3584)
    srd(a, 20, 6, 448 * 3584)
    srd(a, 24, 8, 448 * RS, WS_HT)
    srd(a, 28, 8, 3584 * 4, WS_CS)
    srd(a, 32, 8, 224 * AC, WS_ACT)
    dma(0); dma(1)
    if os.environ.get("FINE"): ST.stamp()
    ACC = 32
    FR = 96
    LG = Lgkm(a)
    def rd_piece(c, ks, p, i):
        st = c % NST
        base = AD + 3 * (st // 2)
        off = (st % 2) * STG + ks * 16 * 256
        f = FR + 16 * p
        if i == 4:
            a(f"ds_read_b128 v[{212+4*(c%2)}:{215+4*(c%2)}], v{192 + st // 2} offset:{(st % 2) * STG}")
            LG.issue(("S", c)); return
        ar, o2 = ((base, 0), (base, 8192), (base + 1, 0), (base + 2, 0))[i]
        a(f"ds_read_b64_tr_b16 v[{f+4*i}:{f+4*i+1}], v{ar} offset:{off+o2}")
        a(f"ds_read_b64_tr_b16 v[{f+4*i+2}:{f+4*i+3}], v{ar} offset:{off+o2+1024}")
        LG.issue((c, ks, i, 0)); LG.issue((c, ks, i, 1))
    def mm(c, ks, first, stat, nxt):
        p = ks
        f = FR + 16 * p
        n = 0
        for s in range(2):
            for g in range(2):
                need = [(c, ks, g, 0), (c, ks, g, 1), (c, ks, 2 + s, 0), (c, ks, 2 + s, 1)]
                if stat is not None: need.append(("S", stat[2]))
                LG.need(need)
                d = ACC + 32 * s + 16 * g
                cc = "0" if first else f"v[{d}:{d+15}]"
                a(f"v_mfma_f32_32x32x16_bf16 v[{d}:{d+15}], v[{f+4*g}:{f+4*g+3}], v[{f+8+4*s}:{f+8+4*s+3}], {cc}")
                if nxt is not None:
                    for i in nxt[3][n]: rd_piece(nxt[0], nxt[1], nxt[2], i)
                if stat is not None:
                    raw, els, _ = stat
                    for e in els[n]:
                        t = 220 + (e % 4)
                        k = e // 2
                        if e % 2 == 0: a(f"v_lshlrev_b32 v{t}, 16, v{raw+k}")
                        else: a(f"v_and_b32 v{t}, 0xffff0000, v{raw+k}")
                        a(f"v_add_f32 v{SA+e}, v{SA+e}, v{t}")
                        a(f"v_fmac_f32 v{SA+8+e}, v{t}, v{t}")
                n += 1
    NC = 14
    def dma_state_save(): return None
    a("s_cmp_ge_u32 s3, 4")
    a("s_cselect_b64 vcc, -1, 0")
    def cs_loads():
        for q in range(4):
            a(f"buffer_load_dwordx4 v[{CS+4*q}:{CS+4*q+3}], v8, s[28:31], s41 offen offset:{32*q}")
            a(f"buffer_load_dwordx4 v[{CS+16+4*q}:{CS+16+4*q+3}], v8, s[28:31], s42 offen offset:{32*q}")
    sched = {0: [2, 3], 1: [4, 5], 2: [6, 7]}
    for c in range(3, NC): sched[c] = [c + 5] if c + 5 < NC else []
    issued = [0, 1]
    a("s_waitcnt vmcnt(3)")
    a("s_barrier")
    ST.stamp()
    for i in (0, 2, 4, 1, 3): rd_piece(0, 0, 0, i)
    def prereduce():
        a("s_nop 1")
        for i in range(8): a(f"v_permlane32_swap_b32 v{SA+i}, v{SA+8+i}")
        a("s_nop 1")
        for i in range(8): a(f"v_add_f32 v{SA+i}, v{SA+i}, v{SA+8+i}")
        a("s_nop 1")
        for i in range(4): a(f"v_permlane16_swap_b32 v{SA+i}, v{SA+4+i}")
        a("s_nop 1")
        for i in range(4): a(f"v_add_f32 v{SA+i}, v{SA+i}, v{SA+4+i}")
        a("v_and_b32 v10, 15, v2")
        a("v_lshrrev_b32 v11, 4, v2")
        a("v_lshlrev_b32 v10, 5, v10")
        a("v_and_b32 v12, 1, v11")
        a("v_lshl_add_u32 v10, v12, 4, v10")
        a("v_lshrrev_b32 v11, 1, v11")
        a("v_lshl_add_u32 v10, v11, 9, v10")
        a(f"s_add_u32 s49, s40, {PB}")
        a("v_add_u32 v10, s49, v10")
        a(f"ds_write_b128 v10, v[{SA}:{SA+3}]")
        a("v_and_b32 v15, 31, v2")
        a("s_lshl_b32 s49, s46, 7")
        a(f"s_add_u32 s49, s49, {PB}")
        a("v_lshlrev_b32 v28, 2, v15")
        a("v_add_u32 v28, s49, v28")
        a("s_lshl_b32 s49, s47, 7")
        a(f"s_add_u32 s49, s49, {PB}")
        a("v_lshlrev_b32 v29, 2, v15")
        a("v_add_u32 v29, s49, v29")
    if os.environ.get("TWICE"):
        a("s_mov_b32 s90, 2")
        a.label("K3_AGAIN")
    for c in range(NC):
        raw = 212 + 4 * (c % 2)
        if c + 1 < NC:
            nw = 3 * (len(issued) - 1 - issued.index(c + 1))
            a(f"s_cbranch_vccz K3_BB{c}")
            a(f"s_waitcnt vmcnt({nw})")
            a("s_barrier")
            a.label(f"K3_BB{c}")
            mm(c, 0, c == 0, (raw, [[0], [1], [2], [3]], c), (c, 1, 1, [[0], [2], [1], [3]]))
            a(f"s_cbranch_vccnz K3_BA{c}")
            a(f"s_waitcnt vmcnt({nw})")
            a("s_barrier")
            a.label(f"K3_BA{c}")
            for k in sched[c]:
                dma(k); issued.append(k)
            if c + 1 == NC - 1: cs_loads()
            mm(c, 1, False, (raw, [[4], [5], [6], [7]], c), (c + 1, 0, 0, [[0, 4], [2], [1], [3]]))
        else:
            mm(c, 0, False, (raw, [[0, 1], [2, 3], [4, 5], [6, 7]], c), (c, 1, 1, [[0], [2], [1], [3]]))
            prereduce()
            a("s_waitcnt lgkmcnt(0)"); LG.q = []
            a("s_barrier")
            f = FR + 16
            n = 0
            for s_ in range(2):
                for g in range(2):
                    d = ACC + 32 * s_ + 16 * g
                    a(f"v_mfma_f32_32x32x16_bf16 v[{d}:{d+15}], v[{f+4*g}:{f+4*g+3}], v[{f+8+4*s_}:{f+8+4*s_+3}], v[{d}:{d+15}]")
                    sl, half = n // 2, n % 2
                    for w in range(4 * half, 4 * half + 4):
                        a(f"ds_read_b32 v{196+16*sl+2*w}, v{28+sl} offset:{1024*w}")
                        a(f"ds_read_b32 v{197+16*sl+2*w}, v{28+sl} offset:{1024*w+512}")
                    n += 1
        if c in (0, 6): ST.stamp()
    ST.stamp()
    if os.environ.get("TWICE"):
        a("s_sub_u32 s90, s90, 1")
        a("s_cmp_lg_u32 s90, 0")
        a("s_cbranch_scc1 K3_AGAIN")
    a("s_waitcnt lgkmcnt(0)")
    for s_ in range(2):
        b = 196 + 16 * s_
        for st in (8, 4, 2):
            for i in range(0, st, 2):
                a(f"v_pk_add_f32 v[{b+i}:{b+i+1}], v[{b+i}:{b+i+1}], v[{b+i+st}:{b+i+st+1}]")
        a(f"v_mov_b32 v{112+2*s_}, v{b}")
        a(f"v_mov_b32 v{113+2*s_}, v{b+1}")
    for s in range(2):
        S, Q = 112 + 2 * s, 113 + 2 * s
        M, R = 116 + 2 * s, 117 + 2 * s
        a(f"v_mul_f32 v{S}, 0x{f2u(1/448.0):08x}, v{S}")
        a(f"v_mul_f32 v{Q}, 0x{f2u(1/448.0):08x}, v{Q}")
        a(f"v_fma_f32 v{Q}, -v{S}, v{S}, v{Q}")
        a(f"v_max_f32 v{Q}, 0, v{Q}")
        a(f"v_cvt_pk_bf16_f32 v{Q}, v{Q}, v{S}")
        a(f"v_and_b32 v{M}, 0xffff0000, v{Q}")
        a(f"v_lshlrev_b32 v{Q}, 16, v{Q}")
        a(f"v_add_f32 v{Q}, 0x{f2u(1e-5):08x}, v{Q}")
        a(f"v_cvt_pk_bf16_f32 v{Q}, v{Q}, v{Q}")
        a(f"v_lshlrev_b32 v{Q}, 16, v{Q}")
        a(f"v_sqrt_f32 v{Q}, v{Q}")
        a("s_nop 0")
        a(f"v_cvt_pk_bf16_f32 v{Q}, v{Q}, v{Q}")
        a(f"v_lshlrev_b32 v{Q}, 16, v{Q}")
        a(f"v_rcp_f32 v{R}, v{Q}")
        a("s_nop 0")
        a(f"v_sub_f32 v{M}, 0, v{M}")
    ST.stamp()
    c0 = -2.0 * math.sqrt(2 / math.pi) * LOG2E
    c1 = c0 * 0.044715
    a(f"s_mov_b32 s50, 0x{f2u(c0):08x}"); a(f"s_mov_b32 s51, 0x{f2u(c0):08x}")
    a(f"s_mov_b32 s52, 0x{f2u(c1):08x}"); a(f"s_mov_b32 s53, 0x{f2u(c1):08x}")
    a("s_mov_b32 s54, 1.0"); a("s_mov_b32 s55, 1.0")
    a("s_lshl_b32 s56, s11, 4")
    a("s_lshl_b32 s57, s14, 2")
    a("s_add_u32 s56, s56, s57")
    a(f"s_mul_i32 s56, s56, {AC}")
    a("s_lshl_b32 s57, s10, 11")
    a("s_add_u32 s56, s56, s57")
    a("v_lshlrev_b32 v28, 4, v15")
    a(f"v_mul_u32_u24 v29, {AC}, v7")
    a("v_add_u32 v28, v28, v29")
    a("s_waitcnt vmcnt(0)")
    T = 120
    for s in range(2):
        M, R = 116 + 2 * s, 117 + 2 * s
        a(f"s_lshl_b32 s58, s{46+s}, 9")
        a("s_add_u32 s58, s58, s56")
        for q in range(4):
            o = 144 + 2 * q + 8 * s
            for h in range(2):
                g = ACC + 32 * s + 4 * q + 2 * h
                u = g + 16
                cg = CS + 4 * q + 2 * h; cu = cg + 16
                t = T + 8 * h
                a(f"v_pk_fma_f32 v[{g}:{g+1}], v[{cg}:{cg+1}], v[{M}:{M+1}], v[{g}:{g+1}] op_sel_hi:[1,0,1]")
                a(f"v_pk_fma_f32 v[{u}:{u+1}], v[{cu}:{cu+1}], v[{M}:{M+1}], v[{u}:{u+1}] op_sel_hi:[1,0,1]")
                a(f"v_pk_mul_f32 v[{g}:{g+1}], v[{g}:{g+1}], v[{M}:{M+1}] op_sel:[0,1] op_sel_hi:[1,1]")
                a(f"v_pk_mul_f32 v[{u}:{u+1}], v[{u}:{u+1}], v[{M}:{M+1}] op_sel:[0,1] op_sel_hi:[1,1]")
                a(f"v_pk_mul_f32 v[{t}:{t+1}], v[{g}:{g+1}], v[{g}:{g+1}]")
                a(f"v_pk_fma_f32 v[{t}:{t+1}], v[{t}:{t+1}], s[52:53], v[{t+2}:{t+3}]") if False else None
                a(f"v_pk_mul_f32 v[{t}:{t+1}], v[{t}:{t+1}], s[52:53]")
                a(f"v_pk_add_f32 v[{t}:{t+1}], v[{t}:{t+1}], s[50:51]")
                a(f"v_pk_mul_f32 v[{t}:{t+1}], v[{t}:{t+1}], v[{g}:{g+1}]")
                a(f"v_exp_f32 v{t}, v{t}")
                a(f"v_exp_f32 v{t+1}, v{t+1}")
                a(f"v_pk_mul_f32 v[{u}:{u+1}], v[{u}:{u+1}], v[{g}:{g+1}]")
                a(f"v_pk_add_f32 v[{t}:{t+1}], v[{t}:{t+1}], s[54:55]")
                a(f"v_rcp_f32 v{t}, v{t}")
                a(f"v_rcp_f32 v{t+1}, v{t+1}")
                a("s_nop 0")
                a(f"v_pk_mul_f32 v[{u}:{u+1}], v[{u}:{u+1}], v[{t}:{t+1}]")
                a(f"v_cvt_pk_bf16_f32 v{o+h}, v{u}, v{u+1}")
        for qp in range(2):
            o = 144 + 4 * qp + 8 * s
            a("s_nop 1")
            a(f"v_permlane32_swap_b32 v{o}, v{o+2}")
            a(f"v_permlane32_swap_b32 v{o+1}, v{o+3}")
            a(f"s_add_u32 s59, s58, {qp*2*AC}")
            a("s_nop 0")
            a(f"buffer_store_dwordx4 v[{o}:{o+3}], v28, s[32:35], s59 offen WT")
    if fused:
        a("s_load_dwordx2 s[4:5], s[0:1], 112")
        a("s_waitcnt vmcnt(0)")
        a("s_barrier")
        a("v_cmp_eq_u32 vcc, 0, v0")
        a("s_and_saveexec_b64 s[8:9], vcc")
        a("s_cbranch_execz K3_END")
        a("s_lshl_b32 s10, s10, 4")
        a("v_mov_b32 v1, s10")
        a("v_mov_b32 v2, 1")
        a("s_waitcnt lgkmcnt(0)")
        a("global_atomic_add v1, v2, s[4:5] sc1")
    ST.stamp(); ST.real()
    ST.flush(3, "K3_ST")
    a.label("K3_END")
    trace_end(a, "3")
    a("s_endpgm")
    if fused:
        import gen_k4
        gen_k4.gen_k4(a, fused=True)
    return descriptor("k3_kernel", 232)
```

```python
from gen_common import *
import math, struct, os
def f2u(x): return struct.unpack("<I", struct.pack("<f", x))[0]
LOG2E = 1.4426950408889634
NST = 6
STG = 24576
PB = NST * STG
K3_LDS = PB + 8192

def gen_k3(a, fused=False):
    kernel_begin(a, "k3_kernel")
    trace_begin(a, "3")
    if fused:
        a("s_cmp_ge_u32 s2, 448")
        a("s_cbranch_scc1 K3_END")
        a("s_cmp_ge_u32 s2, 224")
        a("s_cbranch_scc1 K4_START")
    else:
        a("s_cmp_ge_u32 s2, 224")
        a("s_cbranch_scc1 K3_END")
    ST = Stamper(a, "3"); ST.real(); ST.stamp()
    a("s_load_dwordx4 s[4:7], s[0:1], 80")
    a("s_load_dwordx2 s[8:9], s[0:1], 120")
    a("v_lshrrev_b32 v1, 6, v0")
    a("v_and_b32 v2, 63, v0")
    a("s_and_b32 s10, s2, 7")
    a("s_lshr_b32 s11, s2, 3")
    a("v_readfirstlane_b32 s3, v1")
    a("s_mul_i32 s12, s11, 37")
    a("s_lshr_b32 s12, s12, 8")
    a("s_mul_i32 s13, s12, 7")
    a("s_sub_u32 s11, s11, s13")
    a("s_and_b32 s13, s10, 1")
    a("s_mul_i32 s13, s13, 7")
    a("s_add_u32 s11, s11, s13")
    a("s_lshr_b32 s10, s10, 1")
    a("s_lshl_b32 s10, s10, 2")
    a("s_add_u32 s10, s10, s12")
    a("s_and_b32 s14, s3, 3")
    a("s_lshr_b32 s15, s3, 2")
    a("v_lshrrev_b32 v3, 4, v2")
    a("v_bfe_u32 v4, v2, 2, 2")
    a("v_xor_b32 v4, v4, v3")
    a("v_and_b32 v5, 3, v2")
    a("v_lshl_add_u32 v4, v4, 2, v5")
    a("v_lshlrev_b32 v4, 4, v4")
    a("v_mul_u32_u24 v5, 3584, v3")
    a("v_add_u32 v5, v5, v4")
    a(f"v_mul_u32_u24 v6, {RS}, v3")
    a("v_add_u32 v6, v6, v4")
    a("s_lshl_b32 s36, s3, 2")
    a("s_mul_i32 s37, s36, 3584")
    a("s_lshl_b32 s38, s11, 8")
    a("s_add_u32 s37, s37, s38")
    a(f"s_mul_i32 s39, s36, {RS}")
    a("s_lshl_b32 s38, s10, 8")
    a("s_add_u32 s39, s39, s38")
    a(f"s_sub_u32 s39, s39, {32*RS}")
    a("s_lshl_b32 s40, s3, 10")
    a("v_lshrrev_b32 v7, 5, v2")
    a("v_lshlrev_b32 v8, 4, v7")
    a("s_lshl_b32 s41, s11, 9")
    a("s_lshl_b32 s42, s14, 7")
    a("s_add_u32 s41, s41, s42")
    a("s_add_u32 s42, s41, 7168")
    CS = 160
    def dma(c):
        st = (c % NST) * STG
        a(f"s_add_u32 m0, s40, {st}")
        a(f"s_add_u32 s39, s39, {32*RS}")
        a("buffer_load_dwordx4 v5, s[16:19], s37 offen lds")
        a("s_add_u32 m0, m0, 8192")
        a("s_nop 0")
        a("buffer_load_dwordx4 v5, s[20:23], s37 offen lds")
        a("s_add_u32 m0, m0, 8192")
        a(f"s_add_u32 s37, s37, {32*3584}")
        a("buffer_load_dwordx4 v6, s[24:27], s39 offen lds")
    a("v_lshrrev_b32 v9, 4, v2")
    a("v_bfe_u32 v10, v2, 2, 2")
    a("v_and_b32 v11, 3, v2")
    a("v_lshrrev_b32 v12, 1, v9")
    a("v_lshl_add_u32 v12, v12, 3, v10")
    a("v_lshlrev_b32 v12, 8, v12")
    a("v_and_b32 v9, 1, v9")
    a("v_lshl_add_u32 v12, v9, 5, v12")
    a("v_lshl_add_u32 v12, v11, 3, v12")
    AD = 16
    a("v_xor_b32 v13, s14, v10")
    a(f"v_lshl_add_u32 v{AD}, v13, 6, v12")
    a("s_and_b32 s44, s14, 1")
    a("s_lshl_b32 s45, s15, 1")
    a("s_add_u32 s46, s45, s44")
    a("s_xor_b32 s47, s46, 1")
    a("v_xor_b32 v13, s46, v10")
    a(f"v_lshl_add_u32 v{AD+1}, v13, 6, v12")
    a("v_xor_b32 v13, s47, v10")
    a(f"v_lshl_add_u32 v{AD+2}, v13, 6, v12")
    a(f"v_add_u32 v{AD+1}, 16384, v{AD+1}")
    a(f"v_add_u32 v{AD+2}, 16384, v{AD+2}")
    for s in (1, 2):
        for i in range(3):
            a(f"v_add_u32 v{AD+3*s+i}, {2*STG*s}, v{AD+i}")
    a("v_lshrrev_b32 v9, 4, v0")
    a("v_bfe_u32 v10, v0, 2, 2")
    a("v_and_b32 v11, 3, v9")
    a("v_xor_b32 v10, v10, v11")
    a("v_and_b32 v11, 3, v0")
    a("v_lshl_add_u32 v10, v10, 2, v11")
    a("v_lshlrev_b32 v10, 4, v10")
    a("v_lshl_add_u32 v10, v9, 8, v10")
    a("v_add_u32 v192, 16384, v10")
    a(f"v_add_u32 v193, {16384+2*STG}, v10")
    a(f"v_add_u32 v194, {16384+4*STG}, v10")
    SA = 196
    for i in range(16): a(f"v_mov_b32 v{SA+i}, 0")
    a("s_waitcnt lgkmcnt(0)")
    if os.environ.get("FINE"): ST.stamp()
    srd(a, 16, 4, 448 * 3584)
    srd(a, 20, 6, 448 * 3584)
    srd(a, 24, 8, 448 * RS, WS_HT)
    srd(a, 28, 8, 3584 * 4, WS_CS)
    srd(a, 32, 8, 224 * AC, WS_ACT)
    dma(0); dma(1)
    if os.environ.get("FINE"): ST.stamp()
    ACC = 32
    FR = 96
    LG = Lgkm(a)
    def rd_piece(c, ks, p, i):
        st = c % NST
        base = AD + 3 * (st // 2)
        off = (st % 2) * STG + ks * 16 * 256
        f = FR + 16 * p
        if i == 4:
            a(f"ds_read_b128 v[{212+4*(c%2)}:{215+4*(c%2)}], v{192 + st // 2} offset:{(st % 2) * STG}")
            LG.issue(("S", c)); return
        ar, o2 = ((base, 0), (base, 8192), (base + 1, 0), (base + 2, 0))[i]
        a(f"ds_read_b64_tr_b16 v[{f+4*i}:{f+4*i+1}], v{ar} offset:{off+o2}")
        a(f"ds_read_b64_tr_b16 v[{f+4*i+2}:{f+4*i+3}], v{ar} offset:{off+o2+1024}")
        LG.issue((c, ks, i, 0)); LG.issue((c, ks, i, 1))
    def mm(c, ks, first, stat, nxt):
        p = ks
        f = FR + 16 * p
        n = 0
        for s in range(2):
            for g in range(2):
                need = [(c, ks, g, 0), (c, ks, g, 1), (c, ks, 2 + s, 0), (c, ks, 2 + s, 1)]
                if stat is not None: need.append(("S", stat[2]))
                LG.need(need)
                d = ACC + 32 * s + 16 * g
                cc = "0" if first else f"v[{d}:{d+15}]"
                a(f"v_mfma_f32_32x32x16_bf16 v[{d}:{d+15}], v[{f+4*g}:{f+4*g+3}], v[{f+8+4*s}:{f+8+4*s+3}], {cc}")
                if nxt is not None:
                    for i in nxt[3][n]: rd_piece(nxt[0], nxt[1], nxt[2], i)
                if stat is not None:
                    raw, els, _ = stat
                    for e in els[n]:
                        t = 220 + (e % 4)
                        k = e // 2
                        if e % 2 == 0: a(f"v_lshlrev_b32 v{t}, 16, v{raw+k}")
                        else: a(f"v_and_b32 v{t}, 0xffff0000, v{raw+k}")
                        a(f"v_add_f32 v{SA+e}, v{SA+e}, v{t}")
                        a(f"v_fmac_f32 v{SA+8+e}, v{t}, v{t}")
                n += 1
    NC = 14
    def dma_state_save(): return None
    a("s_cmp_ge_u32 s3, 4")
    a("s_cselect_b64 vcc, -1, 0")
    if os.environ.get("PRIO3"):
        a("s_cbranch_scc0 K3_NP")
        a("s_setprio 1")
        a.label("K3_NP")
    def cs_loads():
        for q in range(4):
            a(f"buffer_load_dwordx4 v[{CS+4*q}:{CS+4*q+3}], v8, s[28:31], s41 offen offset:{32*q}")
            a(f"buffer_load_dwordx4 v[{CS+16+4*q}:{CS+16+4*q+3}], v8, s[28:31], s42 offen offset:{32*q}")
    if os.environ.get("DEEP3"):
        sched = {c: ([c + 5] if c + 5 < NC else []) for c in range(NC)}
        issued = [0, 1, 2, 3, 4]
        for k in (2, 3, 4): dma(k)
        a("s_waitcnt vmcnt(12)")
    else:
        sched = {0: [2, 3], 1: [4, 5], 2: [6, 7]}
        for c in range(3, NC): sched[c] = [c + 5] if c + 5 < NC else []
        issued = [0, 1]
        a("s_waitcnt vmcnt(3)")
    a("s_barrier")
    ST.stamp()
    for i in (0, 2, 4, 1, 3): rd_piece(0, 0, 0, i)
    def prereduce():
        a("s_nop 1")
        for i in range(8): a(f"v_permlane32_swap_b32 v{SA+i}, v{SA+8+i}")
        a("s_nop 1")
        for i in range(8): a(f"v_add_f32 v{SA+i}, v{SA+i}, v{SA+8+i}")
        a("s_nop 1")
        for i in range(4): a(f"v_permlane16_swap_b32 v{SA+i}, v{SA+4+i}")
        a("s_nop 1")
        for i in range(4): a(f"v_add_f32 v{SA+i}, v{SA+i}, v{SA+4+i}")
        a("v_and_b32 v10, 15, v2")
        a("v_lshrrev_b32 v11, 4, v2")
        a("v_lshlrev_b32 v10, 5, v10")
        a("v_and_b32 v12, 1, v11")
        a("v_lshl_add_u32 v10, v12, 4, v10")
        a("v_lshrrev_b32 v11, 1, v11")
        a("v_lshl_add_u32 v10, v11, 9, v10")
        a(f"s_add_u32 s49, s40, {PB}")
        a("v_add_u32 v10, s49, v10")
        a(f"ds_write_b128 v10, v[{SA}:{SA+3}]")
        a("v_and_b32 v15, 31, v2")
        a("s_lshl_b32 s49, s46, 7")
        a(f"s_add_u32 s49, s49, {PB}")
        a("v_lshlrev_b32 v28, 2, v15")
        a("v_add_u32 v28, s49, v28")
        a("s_lshl_b32 s49, s47, 7")
        a(f"s_add_u32 s49, s49, {PB}")
        a("v_lshlrev_b32 v29, 2, v15")
        a("v_add_u32 v29, s49, v29")
    if os.environ.get("TWICE"):
        a("s_mov_b32 s90, 2")
        a.label("K3_AGAIN")
    for c in range(NC):
        raw = 212 + 4 * (c % 2)
        if c + 1 < NC:
            nw = 3 * (len(issued) - 1 - issued.index(c + 1))
            a(f"s_cbranch_vccz K3_BB{c}")
            a(f"s_waitcnt vmcnt({nw})")
            a("s_barrier")
            a.label(f"K3_BB{c}")
            mm(c, 0, c == 0, (raw, [[0], [1], [2], [3]], c), (c, 1, 1, [[0], [2], [1], [3]]))
            a(f"s_cbranch_vccnz K3_BA{c}")
            a(f"s_waitcnt vmcnt({nw})")
            a("s_barrier")
            a.label(f"K3_BA{c}")
            for k in sched[c]:
                dma(k); issued.append(k)
            if c + 1 == NC - 1: cs_loads()
            mm(c, 1, False, (raw, [[4], [5], [6], [7]], c), (c + 1, 0, 0, [[0, 4], [2], [1], [3]]))
        else:
            mm(c, 0, False, (raw, [[0, 1], [2, 3], [4, 5], [6, 7]], c), (c, 1, 1, [[0], [2], [1], [3]]))
            prereduce()
            a("s_waitcnt lgkmcnt(0)"); LG.q = []
            a("s_barrier")
            f = FR + 16
            n = 0
            for s_ in range(2):
                for g in range(2):
                    d = ACC + 32 * s_ + 16 * g
                    a(f"v_mfma_f32_32x32x16_bf16 v[{d}:{d+15}], v[{f+4*g}:{f+4*g+3}], v[{f+8+4*s_}:{f+8+4*s_+3}], v[{d}:{d+15}]")
                    sl, half = n // 2, n % 2
                    for w in range(4 * half, 4 * half + 4):
                        a(f"ds_read_b32 v{196+16*sl+2*w}, v{28+sl} offset:{1024*w}")
                        a(f"ds_read_b32 v{197+16*sl+2*w}, v{28+sl} offset:{1024*w+512}")
                    n += 1
        if c in (0, 6): ST.stamp()
    ST.stamp()
    if os.environ.get("TWICE"):
        a("s_sub_u32 s90, s90, 1")
        a("s_cmp_lg_u32 s90, 0")
        a("s_cbranch_scc1 K3_AGAIN")
    a("s_waitcnt lgkmcnt(0)")
    for s_ in range(2):
        b = 196 + 16 * s_
        for st in (8, 4, 2):
            for i in range(0, st, 2):
                a(f"v_pk_add_f32 v[{b+i}:{b+i+1}], v[{b+i}:{b+i+1}], v[{b+i+st}:{b+i+st+1}]")
        a(f"v_mov_b32 v{112+2*s_}, v{b}")
        a(f"v_mov_b32 v{113+2*s_}, v{b+1}")
    for s in range(2):
        S, Q = 112 + 2 * s, 113 + 2 * s
        M, R = 116 + 2 * s, 117 + 2 * s
        a(f"v_mul_f32 v{S}, 0x{f2u(1/448.0):08x}, v{S}")
        a(f"v_mul_f32 v{Q}, 0x{f2u(1/448.0):08x}, v{Q}")
        a(f"v_fma_f32 v{Q}, -v{S}, v{S}, v{Q}")
        a(f"v_max_f32 v{Q}, 0, v{Q}")
        a(f"v_cvt_pk_bf16_f32 v{Q}, v{Q}, v{S}")
        a(f"v_and_b32 v{M}, 0xffff0000, v{Q}")
        a(f"v_lshlrev_b32 v{Q}, 16, v{Q}")
        a(f"v_add_f32 v{Q}, 0x{f2u(1e-5):08x}, v{Q}")
        a(f"v_cvt_pk_bf16_f32 v{Q}, v{Q}, v{Q}")
        a(f"v_lshlrev_b32 v{Q}, 16, v{Q}")
        a(f"v_sqrt_f32 v{Q}, v{Q}")
        a("s_nop 0")
        a(f"v_cvt_pk_bf16_f32 v{Q}, v{Q}, v{Q}")
        a(f"v_lshlrev_b32 v{Q}, 16, v{Q}")
        a(f"v_rcp_f32 v{R}, v{Q}")
        a("s_nop 0")
        a(f"v_sub_f32 v{M}, 0, v{M}")
    ST.stamp()
    c0 = -2.0 * math.sqrt(2 / math.pi) * LOG2E
    c1 = c0 * 0.044715
    a(f"s_mov_b32 s50, 0x{f2u(c0):08x}"); a(f"s_mov_b32 s51, 0x{f2u(c0):08x}")
    a(f"s_mov_b32 s52, 0x{f2u(c1):08x}"); a(f"s_mov_b32 s53, 0x{f2u(c1):08x}")
    a("s_mov_b32 s54, 1.0"); a("s_mov_b32 s55, 1.0")
    a("s_lshl_b32 s56, s11, 4")
    a("s_lshl_b32 s57, s14, 2")
    a("s_add_u32 s56, s56, s57")
    a(f"s_mul_i32 s56, s56, {AC}")
    a("s_lshl_b32 s57, s10, 11")
    a("s_add_u32 s56, s56, s57")
    a("v_lshlrev_b32 v28, 4, v15")
    a(f"v_mul_u32_u24 v29, {AC}, v7")
    a("v_add_u32 v28, v28, v29")
    a("s_waitcnt vmcnt(0)")
    T = 120
    for s in range(2):
        M, R = 116 + 2 * s, 117 + 2 * s
        a(f"s_lshl_b32 s58, s{46+s}, 9")
        a("s_add_u32 s58, s58, s56")
        for q in range(4):
            o = 144 + 2 * q + 8 * s
            for h in range(2):
                g = ACC + 32 * s + 4 * q + 2 * h
                u = g + 16
                cg = CS + 4 * q + 2 * h; cu = cg + 16
                t = T + 8 * h
                a(f"v_pk_fma_f32 v[{g}:{g+1}], v[{cg}:{cg+1}], v[{M}:{M+1}], v[{g}:{g+1}] op_sel_hi:[1,0,1]")
                a(f"v_pk_fma_f32 v[{u}:{u+1}], v[{cu}:{cu+1}], v[{M}:{M+1}], v[{u}:{u+1}] op_sel_hi:[1,0,1]")
                a(f"v_pk_mul_f32 v[{g}:{g+1}], v[{g}:{g+1}], v[{M}:{M+1}] op_sel:[0,1] op_sel_hi:[1,1]")
                a(f"v_pk_mul_f32 v[{u}:{u+1}], v[{u}:{u+1}], v[{M}:{M+1}] op_sel:[0,1] op_sel_hi:[1,1]")
                a(f"v_pk_mul_f32 v[{t}:{t+1}], v[{g}:{g+1}], v[{g}:{g+1}]")
                a(f"v_pk_fma_f32 v[{t}:{t+1}], v[{t}:{t+1}], s[52:53], v[{t+2}:{t+3}]") if False else None
                a(f"v_pk_mul_f32 v[{t}:{t+1}], v[{t}:{t+1}], s[52:53]")
                a(f"v_pk_add_f32 v[{t}:{t+1}], v[{t}:{t+1}], s[50:51]")
                a(f"v_pk_mul_f32 v[{t}:{t+1}], v[{t}:{t+1}], v[{g}:{g+1}]")
                a(f"v_exp_f32 v{t}, v{t}")
                a(f"v_exp_f32 v{t+1}, v{t+1}")
                a(f"v_pk_mul_f32 v[{u}:{u+1}], v[{u}:{u+1}], v[{g}:{g+1}]")
                a(f"v_pk_add_f32 v[{t}:{t+1}], v[{t}:{t+1}], s[54:55]")
                a(f"v_rcp_f32 v{t}, v{t}")
                a(f"v_rcp_f32 v{t+1}, v{t+1}")
                a("s_nop 0")
                a(f"v_pk_mul_f32 v[{u}:{u+1}], v[{u}:{u+1}], v[{t}:{t+1}]")
                a(f"v_cvt_pk_bf16_f32 v{o+h}, v{u}, v{u+1}")
        for qp in range(2):
            o = 144 + 4 * qp + 8 * s
            a("s_nop 1")
            a(f"v_permlane32_swap_b32 v{o}, v{o+2}")
            a(f"v_permlane32_swap_b32 v{o+1}, v{o+3}")
            a(f"s_add_u32 s59, s58, {qp*2*AC}")
            a("s_nop 0")
            a(f"buffer_store_dwordx4 v[{o}:{o+3}], v28, s[32:35], s59 offen WT")
    if fused:
        a("s_load_dwordx2 s[4:5], s[0:1], 112")
        a("s_waitcnt vmcnt(0)")
        a("s_barrier")
        a("v_cmp_eq_u32 vcc, 0, v0")
        a("s_and_saveexec_b64 s[8:9], vcc")
        a("s_cbranch_execz K3_END")
        a("s_lshl_b32 s10, s10, 4")
        a("v_mov_b32 v1, s10")
        a("v_mov_b32 v2, 1")
        a("s_waitcnt lgkmcnt(0)")
        a("global_atomic_add v1, v2, s[4:5] sc1")
    ST.stamp(); ST.real()
    ST.flush(3, "K3_ST")
    a.label("K3_END")
    trace_end(a, "3")
    a("s_endpgm")
    if fused:
        import gen_k4
        gen_k4.gen_k4(a, fused=True)
    return descriptor("k3_kernel", 232)
```

```python
from gen_common import *
PST = 64 * 272
NST = 4
STG = 32768
HT0 = NST * STG
K4_LDS = HT0 + 8192

def gen_k4(a, fused=False):
    if fused:
        a.label("K4_START")
        a("s_sub_u32 s2, s2, 224")
        a("s_load_dwordx2 s[50:51], s[0:1], 112")
    else:
        kernel_begin(a, "k4_kernel")
        trace_begin(a, "4")
        a("s_cmp_ge_u32 s2, 224")
        a("s_cbranch_scc1 K4_END")
    ST = Stamper(a, "4", 0); ST.real(); ST.stamp()
    a("s_load_dwordx4 s[4:7], s[0:1], 96")
    a("s_load_dwordx2 s[8:9], s[0:1], 120")
    a("v_lshrrev_b32 v1, 6, v0")
    a("v_and_b32 v2, 63, v0")
    a("s_and_b32 s10, s2, 7")
    a("s_lshr_b32 s11, s2, 3")
    a("v_readfirstlane_b32 s3, v1")
    a("s_mul_i32 s12, s11, 37")
    a("s_lshr_b32 s12, s12, 8")
    a("s_mul_i32 s13, s12, 7")
    a("s_sub_u32 s11, s11, s13")
    a("s_lshl_b32 s10, s10, 2")
    a("s_add_u32 s10, s10, s12")
    a("s_lshr_b32 s14, s3, 1")
    a("s_and_b32 s15, s3, 1")
    a("v_lshlrev_b32 v3, 4, v2")
    a("v_lshrrev_b32 v4, 3, v2")
    a("v_bfe_u32 v5, v2, 2, 1")
    a("v_bfe_u32 v6, v2, 4, 1")
    a("v_xor_b32 v5, v5, v6")
    a("v_and_b32 v6, 3, v2")
    a("v_lshl_add_u32 v5, v5, 2, v6")
    a("v_lshlrev_b32 v5, 4, v5")
    a("v_mul_u32_u24 v6, 896, v4")
    a("v_add_u32 v5, v5, v6")
    a("v_and_b32 v6, 7, v2")
    a("v_lshlrev_b32 v6, 4, v6")
    a(f"v_mul_u32_u24 v7, {RS}, v4")
    a("v_add_u32 v6, v6, v7")
    a("s_cmp_eq_u32 s15, 0")
    a("s_cselect_b64 vcc, -1, 0")
    a("v_cndmask_b32 v3, v5, v3, vcc")
    a("s_mul_i32 s38, s14, 56")
    a(f"s_mul_i32 s38, s38, {AC}")
    a("s_lshl_b32 s39, s10, 10")
    a("s_add_u32 s38, s38, s39")
    a("s_mul_i32 s39, s14, 401408")
    a("s_lshl_b32 s40, s11, 7")
    a("s_add_u32 s39, s39, s40")
    a("s_cmp_eq_u32 s15, 0")
    a("s_cselect_b32 s38, s38, s39")
    a(f"s_movk_i32 s42, {8*896}")
    a(f"s_cselect_b32 s39, {AC}, s42")
    a("s_lshl_b32 s40, s14, 13")
    a("s_lshl_b32 s41, s15, 12")
    a("s_add_u32 s41, s41, s40")
    a("v_lshrrev_b32 v9, 4, v2")
    a("v_bfe_u32 v10, v2, 2, 2")
    a("v_and_b32 v11, 3, v2")
    a("v_lshrrev_b32 v12, 1, v9")
    a("v_lshl_add_u32 v12, v12, 3, v10")
    a("v_lshlrev_b32 v12, 7, v12")
    a("v_and_b32 v9, 1, v9")
    a("v_lshl_add_u32 v12, v9, 5, v12")
    a("v_lshl_add_u32 v12, v11, 3, v12")
    a("v_lshrrev_b32 v13, 1, v10")
    a("v_lshl_add_u32 v16, v13, 6, v12")
    a("v_xor_b32 v13, 1, v13")
    a("v_lshl_add_u32 v17, v13, 6, v12")
    a("s_add_u32 s44, s40, 4096")
    a("v_add_u32 v16, s44, v16")
    a("v_add_u32 v17, s44, v17")
    a("v_lshrrev_b32 v7, 5, v2")
    a("v_and_b32 v15, 31, v2")
    a("v_lshlrev_b32 v18, 4, v15")
    a("v_lshl_add_u32 v18, v7, 10, v18")
    a("s_lshl_b32 s44, s15, 9")
    a("s_add_u32 s44, s44, s40")
    a("v_add_u32 v18, s44, v18")
    for i in range(3): a(f"v_add_u32 v{19+i}, 65536, v{16+i}")
    a("s_lshl_b32 s36, s11, 6")
    a("s_lshl_b32 s37, s3, 3")
    a("s_add_u32 s36, s36, s37")
    a(f"s_mul_i32 s36, s36, {RS}")
    a("s_lshl_b32 s37, s10, 7")
    a("s_add_u32 s36, s36, s37")
    a("s_lshl_b32 s37, s3, 10")
    a(f"s_add_u32 s37, s37, {HT0}")
    a("s_waitcnt lgkmcnt(0)")
    srd(a, 16, 4, 1792 * 896)
    srd(a, 20, 6, 2048 * 896)
    srd(a, 24, 8, 448 * RS, WS_HT)
    srd(a, 32, 8, 224 * AC, WS_ACT)
    a("s_cmp_eq_u32 s15, 0")
    for i in range(4): a(f"s_cselect_b32 s{28+i}, s{32+i}, s{16+i}")
    def dma(c):
        st = (c % NST) * STG
        a(f"s_add_u32 s43, s41, {st}")
        for i in range(4):
            a("s_mov_b32 m0, s43")
            a("s_add_u32 s43, s43, 1024")
            a("buffer_load_dwordx4 v3, s[28:31], s38 offen sc1 lds" if fused else "buffer_load_dwordx4 v3, s[28:31], s38 offen lds")
            a("s_add_u32 s38, s38, s39")
    a("s_mov_b32 m0, s37")
    a("s_nop 0")
    a("buffer_load_dwordx4 v6, s[24:27], s36 offen lds")
    if fused:
        a("s_cmp_eq_u32 s15, 0")
        a("s_cbranch_scc1 K4_WAIT")
        for c in range(NST - 1): dma(c)
        a("s_barrier")
        a("s_branch K4_GO")
        a.label("K4_WAIT")
        a("s_cmp_eq_u32 s3, 0")
        a("s_cbranch_scc0 K4_W2")
        a("s_lshr_b32 s52, s10, 1")
        a("s_lshl_b32 s52, s52, 4")
        a("v_mov_b32 v30, s52")
        a.label("K4_POLL")
        a("global_load_dword v31, v30, s[50:51] sc1")
        a("s_waitcnt vmcnt(0)")
        a("v_readfirstlane_b32 s53, v31")
        a("s_nop 3")
        a("s_cmp_ge_u32 s53, 14")
        a("s_cbranch_scc1 K4_W2")
        a("s_sleep 4")
        a("s_branch K4_POLL")
        a.label("K4_W2")
        a("s_barrier")
        a("s_lshl_b32 s38, s38, 0")
        for c in range(NST - 1): dma(c)
        a.label("K4_GO")
    else:
        for c in range(NST - 1): dma(c)
    a("s_cmp_ge_u32 s3, 4")
    a("s_cselect_b64 vcc, -1, 0")
    if os.environ.get("PRIO4"):
        a("s_cbranch_scc0 K4_NP")
        a("s_setprio 1")
        a.label("K4_NP")
    ACC = 32
    FR = 64
    LG = Lgkm(a)
    def rd_piece(c, ks, i):
        st = c % NST
        hi = 3 if st >= 2 else 0
        off = (st % 2) * STG
        f = FR + 16 * ks
        if i < 2:
            a(f"ds_read_b64_tr_b16 v[{f+4*i}:{f+4*i+1}], v{16+hi+i} offset:{off+ks*2048}")
            a(f"ds_read_b64_tr_b16 v[{f+4*i+2}:{f+4*i+3}], v{16+hi+i} offset:{off+ks*2048+512}")
            LG.issue((c, ks, i, 0)); LG.issue((c, ks, i, 1))
        else:
            a(f"ds_read_b128 v[{f+8}:{f+11}], v{18+hi} offset:{off+ks*2048}")
            LG.issue((c, ks, 2, 0))
    def mm(c, ks, first, nxt):
        f = FR + 16 * ks
        for mt in range(2):
            LG.need([(c, ks, mt, 0), (c, ks, mt, 1), (c, ks, 2, 0)])
            d = ACC + 16 * mt
            cc = "0" if first else f"v[{d}:{d+15}]"
            a(f"v_mfma_f32_32x32x16_bf16 v[{d}:{d+15}], v[{f+4*mt}:{f+4*mt+3}], v[{f+8}:{f+11}], {cc}")
            if nxt is not None:
                for i in ((2, 0), (1,))[mt]: rd_piece(nxt[0], nxt[1], i)
    NC = 14
    a(f"s_waitcnt vmcnt({4*(NST-2)})")
    a("s_barrier")
    ST.stamp()
    for i in (2, 0, 1): rd_piece(0, 0, i)
    for c in range(NC):
        issued = min(c + NST - 2, NC - 1)
        if c + 1 < NC:
            a(f"s_cbranch_vccz K4_BB{c}")
            a(f"s_waitcnt vmcnt({4*(issued-(c+1))})")
            a("s_barrier")
            a.label(f"K4_BB{c}")
        mm(c, 0, c == 0, (c, 1))
        if c + 1 < NC:
            a(f"s_cbranch_vccnz K4_BA{c}")
            a(f"s_waitcnt vmcnt({4*(issued-(c+1))})")
            a("s_barrier")
            a.label(f"K4_BA{c}")
            if c + NST - 1 < NC: dma(c + NST - 1)
            mm(c, 1, False, (c + 1, 0))
        else:
            mm(c, 1, False, None)
    ST.stamp()
    a("s_barrier")
    ST.stamp()
    a("v_mul_u32_u24 v20, 272, v15")
    a("v_lshl_add_u32 v20, v7, 4, v20")
    a(f"s_mul_i32 s44, s14, {PST}")
    a(f"s_mul_i32 s45, s15, {32*272}")
    a("s_add_u32 s44, s44, s45")
    a("v_add_u32 v20, s44, v20")
    a.nop(12)
    for mt in range(2):
        for q in range(4):
            r = ACC + 16 * mt + 4 * q
            a(f"ds_write_b128 v20, v[{r}:{r+3}] offset:{mt*128+q*32}")
    a("v_lshrrev_b32 v21, 3, v0")
    a("v_and_b32 v22, 7, v0")
    a("v_mul_u32_u24 v23, 272, v21")
    a("v_lshl_add_u32 v23, v22, 5, v23")
    a("v_lshlrev_b32 v25, 10, v22")
    a("v_lshl_add_u32 v25, v21, 1, v25")
    a(f"v_add_u32 v25, {HT0}, v25")
    a("v_mul_u32_u24 v26, 896, v21")
    a("v_lshl_add_u32 v26, v22, 4, v26")
    a("s_mul_i32 s45, s10, 57344")
    a("s_lshl_b32 s46, s11, 7")
    a("s_add_u32 s45, s45, s46")
    for e in range(8):
        a(f"ds_read_u16 v{96+e}, v25 offset:{128*e}")
    a("s_waitcnt lgkmcnt(0)")
    a("s_barrier")
    for w in range(4):
        a(f"ds_read_b128 v[{32+8*w}:{35+8*w}], v23 offset:{PST*w}")
        a(f"ds_read_b128 v[{36+8*w}:{39+8*w}], v23 offset:{PST*w+16}")
    for e in range(8):
        a(f"v_lshlrev_b32 v{96+e}, 16, v{96+e}")
    a("s_waitcnt lgkmcnt(0)")
    for k in range(4):
        p = 32 + 2 * k
        a(f"v_pk_add_f32 v[{p}:{p+1}], v[{p}:{p+1}], v[{p+8}:{p+9}]")
        a(f"v_pk_add_f32 v[{p+16}:{p+17}], v[{p+16}:{p+17}], v[{p+24}:{p+25}]")
        a(f"v_pk_add_f32 v[{p}:{p+1}], v[{p}:{p+1}], v[{p+16}:{p+17}]")
        a(f"v_cvt_pk_bf16_f32 v104, v{p}, v{p+1}")
        a(f"v_lshlrev_b32 v{p}, 16, v104")
        a(f"v_and_b32 v{p+1}, 0xffff0000, v104")
        a(f"v_pk_add_f32 v[{p}:{p+1}], v[{p}:{p+1}], v[{96+2*k}:{97+2*k}]")
        a(f"v_cvt_pk_bf16_f32 v{108+k}, v{p}, v{p+1}")
    a("buffer_store_dwordx4 v[108:111], v26, s[20:23], s45 offen WT")
    ST.stamp(); ST.real()
    ST.flush(3, "K4_ST")
    a.label("K4_END")
    trace_end(a, "4")
    a("s_endpgm")
    return None if fused else descriptor("k4_kernel", 128)
```

```python
from gen_common import *
import math, struct, os
def f2u(x): return struct.unpack("<I", struct.pack("<f", x))[0]
LOG2E = 1.4426950408889634
NST = 6
STG = 24576
PB = NST * STG
K3_LDS = PB + 8192

def gen_k3(a, fused=False):
    kernel_begin(a, "k3_kernel")
    trace_begin(a, "3")
    if fused:
        a("s_cmp_ge_u32 s2, 448")
        a("s_cbranch_scc1 K3_END")
        a("s_cmp_ge_u32 s2, 224")
        a("s_cbranch_scc1 K4_START")
    else:
        a("s_cmp_ge_u32 s2, 224")
        a("s_cbranch_scc1 K3_END")
    ST = Stamper(a, "3"); ST.real(); ST.stamp()
    a("s_load_dwordx4 s[4:7], s[0:1], 80")
    a("s_load_dwordx2 s[8:9], s[0:1], 120")
    a("v_lshrrev_b32 v1, 6, v0")
    a("v_and_b32 v2, 63, v0")
    a("s_and_b32 s10, s2, 7")
    a("s_lshr_b32 s11, s2, 3")
    a("v_readfirstlane_b32 s3, v1")
    a("s_mul_i32 s12, s11, 37")
    a("s_lshr_b32 s12, s12, 8")
    a("s_mul_i32 s13, s12, 7")
    a("s_sub_u32 s11, s11, s13")
    a("s_and_b32 s13, s10, 1")
    a("s_mul_i32 s13, s13, 7")
    a("s_add_u32 s11, s11, s13")
    a("s_lshr_b32 s10, s10, 1")
    a("s_lshl_b32 s10, s10, 2")
    a("s_add_u32 s10, s10, s12")
    a("s_and_b32 s14, s3, 3")
    a("s_lshr_b32 s15, s3, 2")
    a("v_lshrrev_b32 v3, 4, v2")
    a("v_bfe_u32 v4, v2, 2, 2")
    a("v_xor_b32 v4, v4, v3")
    a("v_and_b32 v5, 3, v2")
    a("v_lshl_add_u32 v4, v4, 2, v5")
    a("v_lshlrev_b32 v4, 4, v4")
    a("v_mul_u32_u24 v5, 3584, v3")
    a("v_add_u32 v5, v5, v4")
    a(f"v_mul_u32_u24 v6, {RS}, v3")
    a("v_add_u32 v6, v6, v4")
    a("s_lshl_b32 s36, s3, 2")
    a("s_mul_i32 s37, s36, 3584")
    a("s_lshl_b32 s38, s11, 8")
    a("s_add_u32 s37, s37, s38")
    a(f"s_mul_i32 s39, s36, {RS}")
    a("s_lshl_b32 s38, s10, 8")
    a("s_add_u32 s39, s39, s38")
    a(f"s_sub_u32 s39, s39, {32*RS}")
    a("s_lshl_b32 s40, s3, 10")
    a("v_lshrrev_b32 v7, 5, v2")
    a("v_lshlrev_b32 v8, 4, v7")
    a("s_lshl_b32 s41, s11, 9")
    a("s_lshl_b32 s42, s14, 7")
    a("s_add_u32 s41, s41, s42")
    a("s_add_u32 s42, s41, 7168")
    CS = 160
    def dma(c):
        st = (c % NST) * STG
        a(f"s_add_u32 m0, s40, {st}")
        a(f"s_add_u32 s39, s39, {32*RS}")
        a("buffer_load_dwordx4 v5, s[16:19], s37 offen lds")
        a("s_add_u32 m0, m0, 8192")
        a("s_nop 0")
        a("buffer_load_dwordx4 v5, s[20:23], s37 offen lds")
        a("s_add_u32 m0, m0, 8192")
        a(f"s_add_u32 s37, s37, {32*3584}")
        a("buffer_load_dwordx4 v6, s[24:27], s39 offen lds")
    a("v_lshrrev_b32 v9, 4, v2")
    a("v_bfe_u32 v10, v2, 2, 2")
    a("v_and_b32 v11, 3, v2")
    a("v_lshrrev_b32 v12, 1, v9")
    a("v_lshl_add_u32 v12, v12, 3, v10")
    a("v_lshlrev_b32 v12, 8, v12")
    a("v_and_b32 v9, 1, v9")
    a("v_lshl_add_u32 v12, v9, 5, v12")
    a("v_lshl_add_u32 v12, v11, 3, v12")
    AD = 16
    a("v_xor_b32 v13, s14, v10")
    a(f"v_lshl_add_u32 v{AD}, v13, 6, v12")
    a("s_and_b32 s44, s14, 1")
    a("s_lshl_b32 s45, s15, 1")
    a("s_add_u32 s46, s45, s44")
    a("s_xor_b32 s47, s46, 1")
    a("v_xor_b32 v13, s46, v10")
    a(f"v_lshl_add_u32 v{AD+1}, v13, 6, v12")
    a("v_xor_b32 v13, s47, v10")
    a(f"v_lshl_add_u32 v{AD+2}, v13, 6, v12")
    a(f"v_add_u32 v{AD+1}, 16384, v{AD+1}")
    a(f"v_add_u32 v{AD+2}, 16384, v{AD+2}")
    for s in (1, 2):
        for i in range(3):
            a(f"v_add_u32 v{AD+3*s+i}, {2*STG*s}, v{AD+i}")
    a("v_lshrrev_b32 v9, 4, v0")
    a("v_bfe_u32 v10, v0, 2, 2")
    a("v_and_b32 v11, 3, v9")
    a("v_xor_b32 v10, v10, v11")
    a("v_and_b32 v11, 3, v0")
    a("v_lshl_add_u32 v10, v10, 2, v11")
    a("v_lshlrev_b32 v10, 4, v10")
    a("v_lshl_add_u32 v10, v9, 8, v10")
    a("v_add_u32 v192, 16384, v10")
    a(f"v_add_u32 v193, {16384+2*STG}, v10")
    a(f"v_add_u32 v194, {16384+4*STG}, v10")
    SA = 196
    for i in range(16): a(f"v_mov_b32 v{SA+i}, 0")
    a("s_waitcnt lgkmcnt(0)")
    if os.environ.get("FINE"): ST.stamp()
    srd(a, 16, 4, 448 * 3584)
    srd(a, 20, 6, 448 * 3584)
    srd(a, 24, 8, 448 * RS, WS_HT)
    srd(a, 28, 8, 3584 * 4, WS_CS)
    srd(a, 32, 8, 224 * AC, WS_ACT)
    dma(0); dma(1)
    if os.environ.get("FINE"): ST.stamp()
    ACC = 32
    FR = 96
    LG = Lgkm(a)
    def rd_piece(c, ks, p, i):
        st = c % NST
        base = AD + 3 * (st // 2)
        off = (st % 2) * STG + ks * 16 * 256
        f = FR + 16 * p
        if i == 4:
            a(f"ds_read_b128 v[{212+4*(c%2)}:{215+4*(c%2)}], v{192 + st // 2} offset:{(st % 2) * STG}")
            LG.issue(("S", c)); return
        ar, o2 = ((base, 0), (base, 8192), (base + 1, 0), (base + 2, 0))[i]
        a(f"ds_read_b64_tr_b16 v[{f+4*i}:{f+4*i+1}], v{ar} offset:{off+o2}")
        a(f"ds_read_b64_tr_b16 v[{f+4*i+2}:{f+4*i+3}], v{ar} offset:{off+o2+1024}")
        LG.issue((c, ks, i, 0)); LG.issue((c, ks, i, 1))
    def mm(c, ks, first, stat, nxt):
        p = ks
        f = FR + 16 * p
        n = 0
        for s in range(2):
            for g in range(2):
                need = [(c, ks, g, 0), (c, ks, g, 1), (c, ks, 2 + s, 0), (c, ks, 2 + s, 1)]
                if stat is not None: need.append(("S", stat[2]))
                LG.need(need)
                d = ACC + 32 * s + 16 * g
                cc = "0" if first else f"v[{d}:{d+15}]"
                a(f"v_mfma_f32_32x32x16_bf16 v[{d}:{d+15}], v[{f+4*g}:{f+4*g+3}], v[{f+8+4*s}:{f+8+4*s+3}], {cc}")
                if nxt is not None:
                    for i in nxt[3][n]: rd_piece(nxt[0], nxt[1], nxt[2], i)
                if stat is not None:
                    raw, els, _ = stat
                    for e in els[n]:
                        t = 220 + (e % 4)
                        k = e // 2
                        if e % 2 == 0: a(f"v_lshlrev_b32 v{t}, 16, v{raw+k}")
                        else: a(f"v_and_b32 v{t}, 0xffff0000, v{raw+k}")
                        a(f"v_add_f32 v{SA+e}, v{SA+e}, v{t}")
                        a(f"v_fmac_f32 v{SA+8+e}, v{t}, v{t}")
                n += 1
    NC = 14
    def dma_state_save(): return None
    a("s_cmp_ge_u32 s3, 4")
    a("s_cselect_b64 vcc, -1, 0")
    if os.environ.get("PRIO3"):
        a("s_cbranch_scc0 K3_NP")
        a("s_setprio 1")
        a.label("K3_NP")
    def cs_loads():
        for q in range(4):
            a(f"buffer_load_dwordx4 v[{CS+4*q}:{CS+4*q+3}], v8, s[28:31], s41 offen offset:{32*q}")
            a(f"buffer_load_dwordx4 v[{CS+16+4*q}:{CS+16+4*q+3}], v8, s[28:31], s42 offen offset:{32*q}")
    if os.environ.get("DEEP3"):
        sched = {c: ([c + 5] if c + 5 < NC else []) for c in range(NC)}
        issued = [0, 1, 2, 3, 4]
        for k in (2, 3, 4): dma(k)
        a("s_waitcnt vmcnt(12)")
    else:
        sched = {0: [2, 3], 1: [4, 5], 2: [6, 7]}
        for c in range(3, NC): sched[c] = [c + 5] if c + 5 < NC else []
        issued = [0, 1]
        a("s_waitcnt vmcnt(3)")
    a("s_barrier")
    ST.stamp()
    for i in (0, 2, 4, 1, 3): rd_piece(0, 0, 0, i)
    def prereduce():
        a("s_nop 1")
        for i in range(8): a(f"v_permlane32_swap_b32 v{SA+i}, v{SA+8+i}")
        a("s_nop 1")
        for i in range(8): a(f"v_add_f32 v{SA+i}, v{SA+i}, v{SA+8+i}")
        a("s_nop 1")
        for i in range(4): a(f"v_permlane16_swap_b32 v{SA+i}, v{SA+4+i}")
        a("s_nop 1")
        for i in range(4): a(f"v_add_f32 v{SA+i}, v{SA+i}, v{SA+4+i}")
        a("v_and_b32 v10, 15, v2")
        a("v_lshrrev_b32 v11, 4, v2")
        a("v_lshlrev_b32 v10, 5, v10")
        a("v_and_b32 v12, 1, v11")
        a("v_lshl_add_u32 v10, v12, 4, v10")
        a("v_lshrrev_b32 v11, 1, v11")
        a("v_lshl_add_u32 v10, v11, 9, v10")
        a(f"s_add_u32 s49, s40, {PB}")
        a("v_add_u32 v10, s49, v10")
        a(f"ds_write_b128 v10, v[{SA}:{SA+3}]")
        a("v_and_b32 v15, 31, v2")
        a("s_lshl_b32 s49, s46, 7")
        a(f"s_add_u32 s49, s49, {PB}")
        a("v_lshlrev_b32 v28, 2, v15")
        a("v_add_u32 v28, s49, v28")
        a("s_lshl_b32 s49, s47, 7")
        a(f"s_add_u32 s49, s49, {PB}")
        a("v_lshlrev_b32 v29, 2, v15")
        a("v_add_u32 v29, s49, v29")
    if os.environ.get("TWICE"):
        a("s_mov_b32 s90, 2")
        a.label("K3_AGAIN")
    for c in range(NC):
        raw = 212 + 4 * (c % 2)
        if c + 1 < NC:
            nw = 3 * (len(issued) - 1 - issued.index(c + 1))
            a(f"s_cbranch_vccz K3_BB{c}")
            a(f"s_waitcnt vmcnt({nw})")
            a("s_barrier")
            a.label(f"K3_BB{c}")
            mm(c, 0, c == 0, (raw, [[0], [1], [2], [3]], c), (c, 1, 1, [[0], [2], [1], [3]]))
            a(f"s_cbranch_vccnz K3_BA{c}")
            a(f"s_waitcnt vmcnt({nw})")
            a("s_barrier")
            a.label(f"K3_BA{c}")
            for k in sched[c]:
                dma(k); issued.append(k)
            if c + 1 == NC - 1: cs_loads()
            mm(c, 1, False, (raw, [[4], [5], [6], [7]], c), (c + 1, 0, 0, [[0, 4], [2], [1], [3]]))
        else:
            mm(c, 0, False, (raw, [[0, 1], [2, 3], [4, 5], [6, 7]], c), (c, 1, 1, [[0], [2], [1], [3]]))
            prereduce()
            a("s_waitcnt lgkmcnt(0)"); LG.q = []
            a("s_barrier")
            f = FR + 16
            n = 0
            for s_ in range(2):
                for g in range(2):
                    d = ACC + 32 * s_ + 16 * g
                    a(f"v_mfma_f32_32x32x16_bf16 v[{d}:{d+15}], v[{f+4*g}:{f+4*g+3}], v[{f+8+4*s_}:{f+8+4*s_+3}], v[{d}:{d+15}]")
                    sl, half = n // 2, n % 2
                    for w in range(4 * half, 4 * half + 4):
                        a(f"ds_read_b32 v{196+16*sl+2*w}, v{28+sl} offset:{1024*w}")
                        a(f"ds_read_b32 v{197+16*sl+2*w}, v{28+sl} offset:{1024*w+512}")
                    n += 1
        if c in (0, 6): ST.stamp()
    ST.stamp()
    if os.environ.get("TWICE"):
        a("s_sub_u32 s90, s90, 1")
        a("s_cmp_lg_u32 s90, 0")
        a("s_cbranch_scc1 K3_AGAIN")
    a("s_waitcnt lgkmcnt(0)")
    for s_ in range(2):
        b = 196 + 16 * s_
        for st in (8, 4, 2):
            for i in range(0, st, 2):
                a(f"v_pk_add_f32 v[{b+i}:{b+i+1}], v[{b+i}:{b+i+1}], v[{b+i+st}:{b+i+st+1}]")
        a(f"v_mov_b32 v{112+2*s_}, v{b}")
        a(f"v_mov_b32 v{113+2*s_}, v{b+1}")
    for s in range(2):
        S, Q = 112 + 2 * s, 113 + 2 * s
        M, R = 116 + 2 * s, 117 + 2 * s
        a(f"v_mul_f32 v{S}, 0x{f2u(1/448.0):08x}, v{S}")
        a(f"v_mul_f32 v{Q}, 0x{f2u(1/448.0):08x}, v{Q}")
        a(f"v_fma_f32 v{Q}, -v{S}, v{S}, v{Q}")
        a(f"v_max_f32 v{Q}, 0, v{Q}")
        a(f"v_cvt_pk_bf16_f32 v{Q}, v{Q}, v{S}")
        a(f"v_and_b32 v{M}, 0xffff0000, v{Q}")
        a(f"v_lshlrev_b32 v{Q}, 16, v{Q}")
        a(f"v_add_f32 v{Q}, 0x{f2u(1e-5):08x}, v{Q}")
        a(f"v_cvt_pk_bf16_f32 v{Q}, v{Q}, v{Q}")
        a(f"v_lshlrev_b32 v{Q}, 16, v{Q}")
        a(f"v_sqrt_f32 v{Q}, v{Q}")
        a("s_nop 0")
        a(f"v_cvt_pk_bf16_f32 v{Q}, v{Q}, v{Q}")
        a(f"v_lshlrev_b32 v{Q}, 16, v{Q}")
        a(f"v_rcp_f32 v{R}, v{Q}")
        a("s_nop 0")
        a(f"v_sub_f32 v{M}, 0, v{M}")
    ST.stamp()
    c0 = -2.0 * math.sqrt(2 / math.pi) * LOG2E
    c1 = c0 * 0.044715
    a(f"s_mov_b32 s50, 0x{f2u(c0):08x}"); a(f"s_mov_b32 s51, 0x{f2u(c0):08x}")
    a(f"s_mov_b32 s52, 0x{f2u(c1):08x}"); a(f"s_mov_b32 s53, 0x{f2u(c1):08x}")
    a("s_mov_b32 s54, 1.0"); a("s_mov_b32 s55, 1.0")
    a("s_lshl_b32 s56, s11, 4")
    a("s_lshl_b32 s57, s14, 2")
    a("s_add_u32 s56, s56, s57")
    a(f"s_mul_i32 s56, s56, {AC}")
    a("s_lshl_b32 s57, s10, 11")
    a("s_add_u32 s56, s56, s57")
    a("v_lshlrev_b32 v28, 4, v15")
    a(f"v_mul_u32_u24 v29, {AC}, v7")
    a("v_add_u32 v28, v28, v29")
    a("s_waitcnt vmcnt(0)")
    T = 120
    for s in range(2):
        M, R = 116 + 2 * s, 117 + 2 * s
        a(f"s_lshl_b32 s58, s{46+s}, 9")
        a("s_add_u32 s58, s58, s56")
        for q in range(4):
            o = 144 + 2 * q + 8 * s
            for h in range(2):
                g = ACC + 32 * s + 4 * q + 2 * h
                u = g + 16
                cg = CS + 4 * q + 2 * h; cu = cg + 16
                t = T + 8 * h
                a(f"v_pk_fma_f32 v[{g}:{g+1}], v[{cg}:{cg+1}], v[{M}:{M+1}], v[{g}:{g+1}] op_sel_hi:[1,0,1]")
                a(f"v_pk_fma_f32 v[{u}:{u+1}], v[{cu}:{cu+1}], v[{M}:{M+1}], v[{u}:{u+1}] op_sel_hi:[1,0,1]")
                a(f"v_pk_mul_f32 v[{g}:{g+1}], v[{g}:{g+1}], v[{M}:{M+1}] op_sel:[0,1] op_sel_hi:[1,1]")
                a(f"v_pk_mul_f32 v[{u}:{u+1}], v[{u}:{u+1}], v[{M}:{M+1}] op_sel:[0,1] op_sel_hi:[1,1]")
                a(f"v_pk_mul_f32 v[{t}:{t+1}], v[{g}:{g+1}], v[{g}:{g+1}]")
                a(f"v_pk_fma_f32 v[{t}:{t+1}], v[{t}:{t+1}], s[52:53], v[{t+2}:{t+3}]") if False else None
                a(f"v_pk_mul_f32 v[{t}:{t+1}], v[{t}:{t+1}], s[52:53]")
                a(f"v_pk_add_f32 v[{t}:{t+1}], v[{t}:{t+1}], s[50:51]")
                a(f"v_pk_mul_f32 v[{t}:{t+1}], v[{t}:{t+1}], v[{g}:{g+1}]")
                a(f"v_exp_f32 v{t}, v{t}")
                a(f"v_exp_f32 v{t+1}, v{t+1}")
                a(f"v_pk_mul_f32 v[{u}:{u+1}], v[{u}:{u+1}], v[{g}:{g+1}]")
                a(f"v_pk_add_f32 v[{t}:{t+1}], v[{t}:{t+1}], s[54:55]")
                a(f"v_rcp_f32 v{t}, v{t}")
                a(f"v_rcp_f32 v{t+1}, v{t+1}")
                a("s_nop 0")
                a(f"v_pk_mul_f32 v[{u}:{u+1}], v[{u}:{u+1}], v[{t}:{t+1}]")
                a(f"v_cvt_pk_bf16_f32 v{o+h}, v{u}, v{u+1}")
            if q % 2 == 1:
                qp = q // 2
                o = 144 + 4 * qp + 8 * s
                a("s_nop 1")
                a(f"v_permlane32_swap_b32 v{o}, v{o+2}")
                a(f"v_permlane32_swap_b32 v{o+1}, v{o+3}")
                a(f"s_add_u32 s59, s58, {qp*2*AC}")
                a("s_nop 0")
                a(f"buffer_store_dwordx4 v[{o}:{o+3}], v28, s[32:35], s59 offen WT")
    if fused:
        a("s_load_dwordx2 s[4:5], s[0:1], 112")
        a("s_waitcnt vmcnt(0)")
        a("s_barrier")
        a("v_cmp_eq_u32 vcc, 0, v0")
        a("s_and_saveexec_b64 s[8:9], vcc")
        a("s_cbranch_execz K3_END")
        a("s_lshl_b32 s10, s10, 4")
        a("v_mov_b32 v1, s10")
        a("v_mov_b32 v2, 1")
        a("s_waitcnt lgkmcnt(0)")
        a("global_atomic_add v1, v2, s[4:5] sc1")
    ST.stamp(); ST.real()
    ST.flush(3, "K3_ST")
    a.label("K3_END")
    trace_end(a, "3")
    a("s_endpgm")
    if fused:
        import gen_k4
        gen_k4.gen_k4(a, fused=True)
    return descriptor("k3_kernel", 232)
```

```python
from gen_common import *
PST = 64 * 272
NST = 4
STG = 32768
HT0 = NST * STG
K4_LDS = HT0 + 8192

def gen_k4(a, fused=False):
    if fused:
        a.label("K4_START")
        a("s_sub_u32 s2, s2, 224")
        a("s_load_dwordx2 s[50:51], s[0:1], 112")
    else:
        kernel_begin(a, "k4_kernel")
        trace_begin(a, "4")
        a("s_cmp_ge_u32 s2, 224")
        a("s_cbranch_scc1 K4_END")
    ST = Stamper(a, "4", 0); ST.real(); ST.stamp()
    a("s_load_dwordx4 s[4:7], s[0:1], 96")
    a("s_load_dwordx2 s[8:9], s[0:1], 120")
    a("v_lshrrev_b32 v1, 6, v0")
    a("v_and_b32 v2, 63, v0")
    a("s_and_b32 s10, s2, 7")
    a("s_lshr_b32 s11, s2, 3")
    a("v_readfirstlane_b32 s3, v1")
    a("s_mul_i32 s12, s11, 37")
    a("s_lshr_b32 s12, s12, 8")
    a("s_mul_i32 s13, s12, 7")
    a("s_sub_u32 s11, s11, s13")
    a("s_lshl_b32 s10, s10, 2")
    a("s_add_u32 s10, s10, s12")
    a("s_lshr_b32 s14, s3, 1")
    a("s_and_b32 s15, s3, 1")
    a("v_lshlrev_b32 v3, 4, v2")
    a("v_lshrrev_b32 v4, 3, v2")
    a("v_bfe_u32 v5, v2, 2, 1")
    a("v_bfe_u32 v6, v2, 4, 1")
    a("v_xor_b32 v5, v5, v6")
    a("v_and_b32 v6, 3, v2")
    a("v_lshl_add_u32 v5, v5, 2, v6")
    a("v_lshlrev_b32 v5, 4, v5")
    a("v_mul_u32_u24 v6, 896, v4")
    a("v_add_u32 v5, v5, v6")
    a("v_and_b32 v6, 7, v2")
    a("v_lshlrev_b32 v6, 4, v6")
    a(f"v_mul_u32_u24 v7, {RS}, v4")
    a("v_add_u32 v6, v6, v7")
    a("s_cmp_eq_u32 s15, 0")
    a("s_cselect_b64 vcc, -1, 0")
    a("v_cndmask_b32 v3, v5, v3, vcc")
    a("s_mul_i32 s38, s14, 56")
    a(f"s_mul_i32 s38, s38, {AC}")
    a("s_lshl_b32 s39, s10, 10")
    a("s_add_u32 s38, s38, s39")
    a("s_mul_i32 s39, s14, 401408")
    a("s_lshl_b32 s40, s11, 7")
    a("s_add_u32 s39, s39, s40")
    a("s_cmp_eq_u32 s15, 0")
    a("s_cselect_b32 s38, s38, s39")
    a(f"s_movk_i32 s42, {8*896}")
    a(f"s_cselect_b32 s39, {AC}, s42")
    a("s_lshl_b32 s40, s14, 13")
    a("s_lshl_b32 s41, s15, 12")
    a("s_add_u32 s41, s41, s40")
    a("v_lshrrev_b32 v9, 4, v2")
    a("v_bfe_u32 v10, v2, 2, 2")
    a("v_and_b32 v11, 3, v2")
    a("v_lshrrev_b32 v12, 1, v9")
    a("v_lshl_add_u32 v12, v12, 3, v10")
    a("v_lshlrev_b32 v12, 7, v12")
    a("v_and_b32 v9, 1, v9")
    a("v_lshl_add_u32 v12, v9, 5, v12")
    a("v_lshl_add_u32 v12, v11, 3, v12")
    a("v_lshrrev_b32 v13, 1, v10")
    a("v_lshl_add_u32 v16, v13, 6, v12")
    a("v_xor_b32 v13, 1, v13")
    a("v_lshl_add_u32 v17, v13, 6, v12")
    a("s_add_u32 s44, s40, 4096")
    a("v_add_u32 v16, s44, v16")
    a("v_add_u32 v17, s44, v17")
    a("v_lshrrev_b32 v7, 5, v2")
    a("v_and_b32 v15, 31, v2")
    a("v_lshlrev_b32 v18, 4, v15")
    a("v_lshl_add_u32 v18, v7, 10, v18")
    a("s_lshl_b32 s44, s15, 9")
    a("s_add_u32 s44, s44, s40")
    a("v_add_u32 v18, s44, v18")
    for i in range(3): a(f"v_add_u32 v{19+i}, 65536, v{16+i}")
    a("s_lshl_b32 s36, s11, 6")
    a("s_lshl_b32 s37, s3, 3")
    a("s_add_u32 s36, s36, s37")
    a(f"s_mul_i32 s36, s36, {RS}")
    a("s_lshl_b32 s37, s10, 7")
    a("s_add_u32 s36, s36, s37")
    a("s_lshl_b32 s37, s3, 10")
    a(f"s_add_u32 s37, s37, {HT0}")
    a("s_waitcnt lgkmcnt(0)")
    srd(a, 16, 4, 1792 * 896)
    srd(a, 20, 6, 2048 * 896)
    srd(a, 24, 8, 448 * RS, WS_HT)
    srd(a, 32, 8, 224 * AC, WS_ACT)
    a("s_cmp_eq_u32 s15, 0")
    for i in range(4): a(f"s_cselect_b32 s{28+i}, s{32+i}, s{16+i}")
    def dma(c):
        st = (c % NST) * STG
        a(f"s_add_u32 s43, s41, {st}")
        for i in range(4):
            a("s_mov_b32 m0, s43")
            a("s_add_u32 s43, s43, 1024")
            a("buffer_load_dwordx4 v3, s[28:31], s38 offen sc1 lds" if fused else "buffer_load_dwordx4 v3, s[28:31], s38 offen lds")
            a("s_add_u32 s38, s38, s39")
    a("s_mov_b32 m0, s37")
    a("s_nop 0")
    a("buffer_load_dwordx4 v6, s[24:27], s36 offen lds")
    if fused:
        a("s_cmp_eq_u32 s15, 0")
        a("s_cbranch_scc1 K4_WAIT")
        for c in range(NST - 1): dma(c)
        a("s_barrier")
        a("s_branch K4_GO")
        a.label("K4_WAIT")
        a("s_cmp_eq_u32 s3, 0")
        a("s_cbranch_scc0 K4_W2")
        a("s_lshr_b32 s52, s10, 1")
        a("s_lshl_b32 s52, s52, 4")
        a("v_mov_b32 v30, s52")
        a.label("K4_POLL")
        a("global_load_dword v31, v30, s[50:51] sc1")
        a("s_waitcnt vmcnt(0)")
        a("v_readfirstlane_b32 s53, v31")
        a("s_nop 3")
        a("s_cmp_ge_u32 s53, 14")
        a("s_cbranch_scc1 K4_W2")
        a("s_sleep 4")
        a("s_branch K4_POLL")
        a.label("K4_W2")
        a("s_barrier")
        a("s_lshl_b32 s38, s38, 0")
        for c in range(NST - 1): dma(c)
        a.label("K4_GO")
    else:
        for c in range(NST - 1): dma(c)
    a("s_cmp_ge_u32 s3, 4")
    a("s_cselect_b64 vcc, -1, 0")
    if os.environ.get("PRIO4"):
        a("s_cbranch_scc0 K4_NP")
        a("s_setprio 1")
        a.label("K4_NP")
    ACC = 32
    FR = 64
    LG = Lgkm(a)
    def rd_piece(c, ks, i):
        st = c % NST
        hi = 3 if st >= 2 else 0
        off = (st % 2) * STG
        f = FR + 16 * ks
        if i < 2:
            a(f"ds_read_b64_tr_b16 v[{f+4*i}:{f+4*i+1}], v{16+hi+i} offset:{off+ks*2048}")
            a(f"ds_read_b64_tr_b16 v[{f+4*i+2}:{f+4*i+3}], v{16+hi+i} offset:{off+ks*2048+512}")
            LG.issue((c, ks, i, 0)); LG.issue((c, ks, i, 1))
        else:
            a(f"ds_read_b128 v[{f+8}:{f+11}], v{18+hi} offset:{off+ks*2048}")
            LG.issue((c, ks, 2, 0))
    def mm(c, ks, first, nxt):
        f = FR + 16 * ks
        for mt in range(2):
            LG.need([(c, ks, mt, 0), (c, ks, mt, 1), (c, ks, 2, 0)])
            d = ACC + 16 * mt
            cc = "0" if first else f"v[{d}:{d+15}]"
            a(f"v_mfma_f32_32x32x16_bf16 v[{d}:{d+15}], v[{f+4*mt}:{f+4*mt+3}], v[{f+8}:{f+11}], {cc}")
            if nxt is not None:
                for i in ((2, 0), (1,))[mt]: rd_piece(nxt[0], nxt[1], i)
    NC = 14
    a(f"s_waitcnt vmcnt({4*(NST-2)})")
    a("s_barrier")
    ST.stamp()
    for i in (2, 0, 1): rd_piece(0, 0, i)
    for c in range(NC):
        issued = min(c + NST - 2, NC - 1)
        if c + 1 < NC:
            a(f"s_cbranch_vccz K4_BB{c}")
            a(f"s_waitcnt vmcnt({4*(issued-(c+1))})")
            a("s_barrier")
            a.label(f"K4_BB{c}")
        mm(c, 0, c == 0, (c, 1))
        if c + 1 < NC:
            a(f"s_cbranch_vccnz K4_BA{c}")
            a(f"s_waitcnt vmcnt({4*(issued-(c+1))})")
            a("s_barrier")
            a.label(f"K4_BA{c}")
            if c + NST - 1 < NC: dma(c + NST - 1)
            mm(c, 1, False, (c + 1, 0))
        else:
            mm(c, 1, False, None)
    a("v_lshrrev_b32 v21, 3, v0")
    a("v_and_b32 v22, 7, v0")
    a("v_mul_u32_u24 v23, 272, v21")
    a("v_lshl_add_u32 v23, v22, 5, v23")
    a("v_lshlrev_b32 v25, 10, v22")
    a("v_lshl_add_u32 v25, v21, 1, v25")
    a(f"v_add_u32 v25, {HT0}, v25")
    a("v_mul_u32_u24 v26, 896, v21")
    a("v_lshl_add_u32 v26, v22, 4, v26")
    a("s_mul_i32 s45, s10, 57344")
    a("s_lshl_b32 s46, s11, 7")
    a("s_add_u32 s45, s45, s46")
    for e in range(8):
        a(f"ds_read_u16 v{96+e}, v25 offset:{128*e}")
    a("v_mul_u32_u24 v20, 272, v15")
    a("v_lshl_add_u32 v20, v7, 4, v20")
    a(f"s_mul_i32 s44, s14, {PST}")
    a(f"s_mul_i32 s47, s15, {32*272}")
    a("s_add_u32 s44, s44, s47")
    a("v_add_u32 v20, s44, v20")
    ST.stamp()
    a("s_barrier")
    ST.stamp()
    a.nop(4)
    for mt in range(2):
        for q in range(4):
            r = ACC + 16 * mt + 4 * q
            a(f"ds_write_b128 v20, v[{r}:{r+3}] offset:{mt*128+q*32}")
    a("s_waitcnt lgkmcnt(0)")
    a("s_barrier")
    for w in range(4):
        a(f"ds_read_b128 v[{32+8*w}:{35+8*w}], v23 offset:{PST*w}")
        a(f"ds_read_b128 v[{36+8*w}:{39+8*w}], v23 offset:{PST*w+16}")
    for e in range(8):
        a(f"v_lshlrev_b32 v{96+e}, 16, v{96+e}")
    a("s_waitcnt lgkmcnt(0)")
    for k in range(4):
        p = 32 + 2 * k
        a(f"v_pk_add_f32 v[{p}:{p+1}], v[{p}:{p+1}], v[{p+8}:{p+9}]")
        a(f"v_pk_add_f32 v[{p+16}:{p+17}], v[{p+16}:{p+17}], v[{p+24}:{p+25}]")
        a(f"v_pk_add_f32 v[{p}:{p+1}], v[{p}:{p+1}], v[{p+16}:{p+17}]")
        a(f"v_cvt_pk_bf16_f32 v104, v{p}, v{p+1}")
        a(f"v_lshlrev_b32 v{p}, 16, v104")
        a(f"v_and_b32 v{p+1}, 0xffff0000, v104")
        a(f"v_pk_add_f32 v[{p}:{p+1}], v[{p}:{p+1}], v[{96+2*k}:{97+2*k}]")
        a(f"v_cvt_pk_bf16_f32 v{108+k}, v{p}, v{p+1}")
    a("buffer_store_dwordx4 v[108:111], v26, s[20:23], s45 offen WT")
    ST.stamp(); ST.real()
    ST.flush(3, "K4_ST")
    a.label("K4_END")
    trace_end(a, "4")
    a("s_endpgm")
    return None if fused else descriptor("k4_kernel", 128)
```

```python
from gen_common import *
KC_STRIDE = 4416
U0 = 8 * KC_STRIDE
K2_LDS = U0 + 4096 + 8192
PSTR = 8704

def gen_k2(a):
    kernel_begin(a, "k2_kernel")
    trace_begin(a, "2")
    a("s_cmp_ge_u32 s2, 504")
    a("s_cbranch_scc1 K2_END")
    a("s_load_dwordx2 s[6:7], s[0:1], 120")
    a("s_cmp_ge_u32 s2, 448")
    a("s_cbranch_scc1 K2_CS")
    ST = Stamper(a, "2", 100); ST.real(); ST.stamp()
    a("s_load_dwordx2 s[4:5], s[0:1], 64")
    a("s_load_dwordx2 s[42:43], s[0:1], 0")
    a("s_load_dwordx2 s[40:41], s[0:1], 96")
    a("v_lshrrev_b32 v1, 6, v0")
    a("v_and_b32 v2, 63, v0")
    a("s_nop 0")
    a("v_readfirstlane_b32 s3, v1")
    a("v_lshlrev_b32 v3, 4, v2")
    a("v_lshlrev_b32 v4, 4, v0")
    a("s_waitcnt lgkmcnt(0)")
    srd(a, 8, 6, 448 * KP_STRIDE, WS_KP)
    srd(a, 12, 6, 448 * UR_STRIDE, WS_UR)
    srd(a, 16, 6, 448 * RS, WS_XT)
    srd(a, 20, 6, 448 * RS, WS_HT)
    srd(a, 24, 4, 896)
    a(f"s_mul_i32 s30, s2, {KP_STRIDE}")
    a(f"s_mul_i32 s31, s2, {UR_STRIDE}")
    a(f"s_mul_i32 s32, s2, {RS}")
    a("s_lshl_b32 s33, s2, 1")
    a("buffer_load_dwordx4 v[96:99], v4, s[8:11], s30 offen")
    a("buffer_load_dwordx4 v[100:103], v4, s[8:11], s30 offen offset:16")
    a("v_and_b32 v21, 15, v0")
    a("v_lshlrev_b32 v21, 4, v21")
    a("v_add_u32 v22, 4096, v21")
    a("s_cmp_eq_u32 s3, 0")
    a("s_cbranch_scc0 K2_NK2")
    a("buffer_load_dwordx4 v[128:131], v22, s[8:11], s30 offen")
    a("buffer_load_dwordx4 v[132:135], v22, s[8:11], s30 offen offset:16")
    a.label("K2_NK2")
    a("v_lshrrev_b32 v13, 3, v2")
    a("v_lshrrev_b32 v14, 1, v13")
    a("s_and_b32 s34, s3, 1")
    a("s_lshl_b32 s34, s34, 2")
    a("v_or_b32 v14, s34, v14")
    a("v_and_b32 v15, 7, v2")
    a("v_xor_b32 v14, v14, v15")
    a("v_lshlrev_b32 v14, 4, v14")
    a("v_lshl_add_u32 v14, v13, 7, v14")
    a("s_lshl_b32 s34, s3, 10")
    a(f"s_add_u32 s35, s34, {U0}")
    a("s_add_u32 s34, s34, s31")
    a("s_mov_b32 m0, s35")
    a("s_nop 0")
    a("buffer_load_dwordx4 v14, s[12:15], s34 offen lds")
    a("buffer_load_dwordx4 v[8:11], v4, s[16:19], s32 offen")
    a("v_mov_b32 v5, 0")
    a("buffer_load_ushort v12, v5, s[24:27], s33 offen")
    srd(a, 44, 40, 1792 * 896)
    a("s_mul_i32 s50, s2, 3584")
    a("v_cmp_gt_u32 vcc, 224, v0")
    a("s_and_saveexec_b64 s[48:49], vcc")
    a("s_cbranch_execz K2_NOT")
    a("buffer_load_dwordx4 v[144:147], v4, s[44:47], s50 offen")
    a.label("K2_NOT")
    a("s_mov_b64 exec, -1")
    a("v_mov_b32 v16, 0"); a("v_mov_b32 v17, 0"); a("v_mov_b32 v18, 0"); a("v_mov_b32 v19, 0")
    a(f"ds_write_b128 v4, v[16:19] offset:{U0+4096}")
    a(f"ds_write_b128 v4, v[16:19] offset:{U0+4096+4096}")
    def copies(src, dst):
        for i in range(1, 8): a(f"v_mov_b32 v{104+i-1}, v{src+i}")
        for i in range(6): a(f"v_alignbit_b32 v{112+i}, v{src+1+i}, v{src+i}, 16")
        for i in range(1, 7): a(f"v_alignbit_b32 v{120+i-1}, v{src+1+i}, v{src+i}, 16")
        quads = {0: src, 2: 104, 4: src + 2, 6: 106, 1: 112, 3: 120, 5: 114, 7: 122}
        for rho in range(8):
            q = quads[rho]
            a(f"ds_write_b128 v{dst}, v[{q}:{q+3}] offset:{rho*KC_STRIDE}")
    a("s_cmp_eq_u32 s3, 0")
    a("s_cbranch_scc1 K2_C0")
    a("s_waitcnt vmcnt(4)")
    a("s_branch K2_C1")
    a.label("K2_C0")
    a("s_waitcnt vmcnt(4)")
    a.label("K2_C1")
    copies(96, 4)
    a("s_cmp_eq_u32 s3, 0")
    a("s_cbranch_scc0 K2_NC2")
    a("s_nop 1")
    copies(128, 22)
    a.label("K2_NC2")
    a("v_and_b32 v6, 31, v2")
    a("v_lshrrev_b32 v7, 5, v2")
    a("v_and_b32 v13, 7, v6")
    a(f"v_mul_u32_u24 v14, {KC_STRIDE}, v13")
    a("v_sub_u32 v13, v6, v13")
    a("v_lshl_add_u32 v14, v13, 1, v14")
    a("v_lshl_add_u32 v14, v7, 4, v14")
    a("v_sub_u32 v16, 31, v6")
    a("s_waitcnt vmcnt(0) lgkmcnt(0)")
    a("s_barrier")
    ST.stamp()
    ACC = 32
    AF = 64
    BF = 96
    splits = [(0, 33), (33, 66), (66, 99), (99, 132)]
    for w, (k0, k1) in enumerate(splits):
        if w < 3:
            a(f"s_cmp_eq_u32 s3, {w}")
            a(f"s_cbranch_scc0 K2_W{w+1}")
        def rdA(f): a(f"ds_read_b128 v[{AF+4*(f%8)}:{AF+4*(f%8)+3}], v14 offset:{32*f}")
        state = {"n4": None}
        def rdB(k):
            n4 = k // 4
            if state["n4"] != n4:
                state["n4"] = n4
                a(f"v_add_u32 v17, {n4}, v16")
                a("v_bfe_u32 v18, v17, 1, 3")
                a("v_xor_b32 v18, v18, v7")
                a("v_lshlrev_b32 v17, 7, v17")
                a("v_lshl_add_u32 v15, v18, 4, v17")
            ar = 15
            if k % 4:
                ar = 19 + (k % 4) - 1
                a(f"v_xor_b32 v{ar}, {32*(k%4)}, v15")
            a(f"ds_read_b128 v[{BF+4*(k%4)}:{BF+4*(k%4)+3}], v{ar} offset:{U0}")
        rdA(k0); rdA(k0 + 1)
        PF = 2
        for k in range(k0, min(k0 + PF, k1)):
            rdA(k + 2); rdB(k)
        for k in range(k0, k1):
            if k + PF < k1:
                rdA(k + PF + 2); rdB(k + PF)
                a(f"s_waitcnt lgkmcnt({2*PF})")
            else:
                a(f"s_waitcnt lgkmcnt({2*(k1-1-k)})")
            c0 = "0" if k == k0 else f"v[{ACC}:{ACC+15}]"
            c1 = "0" if k == k0 else f"v[{ACC+16}:{ACC+31}]"
            b = BF + 4 * (k % 4)
            f0 = AF + 4 * (k % 8); f1 = AF + 4 * ((k + 2) % 8)
            a(f"v_mfma_f32_32x32x16_bf16 v[{ACC}:{ACC+15}], v[{f0}:{f0+3}], v[{b}:{b+3}], {c0}")
            a(f"v_mfma_f32_32x32x16_bf16 v[{ACC+16}:{ACC+31}], v[{f1}:{f1+3}], v[{b}:{b+3}], {c1}")
        if w < 3:
            a("s_branch K2_RED")
            a.label(f"K2_W{w+1}")
    a.label("K2_RED")
    a("v_lshrrev_b32 v21, 3, v0")
    a("v_and_b32 v22, 7, v0")
    a("v_mul_u32_u24 v21, 272, v21")
    a("v_lshl_add_u32 v21, v22, 5, v21")
    a("v_lshlrev_b32 v22, 3, v0")
    a("v_sub_u32 v22, 2040, v22")
    a("v_lshrrev_b32 v23, 6, v22")
    a("v_bfe_u32 v22, v22, 3, 3")
    a("v_bfe_u32 v24, v23, 1, 3")
    a("v_xor_b32 v22, v22, v24")
    a("v_lshlrev_b32 v22, 4, v22")
    a("v_lshl_add_u32 v22, v23, 7, v22")
    a(f"ds_read_b128 v[24:27], v22 offset:{U0}")
    a("s_waitcnt lgkmcnt(0)")
    for k in range(4):
        a(f"v_and_b32 v{96+(7-(2*k+1))}, 0xffff0000, v{24+k}")
        a(f"v_lshlrev_b32 v{96+(7-2*k)}, 16, v{24+k}")
    for k in range(4):
        a(f"v_lshlrev_b32 v{104+2*k}, 16, v{8+k}")
        a(f"v_and_b32 v{105+2*k}, 0xffff0000, v{8+k}")
    a("v_lshlrev_b32 v12, 16, v12")
    for k in range(4):
        a(f"v_mul_f32 v{96+2*k}, v12, v{96+2*k}")
        a(f"v_mul_f32 v{97+2*k}, v12, v{97+2*k}")
        a(f"v_cvt_pk_bf16_f32 v{28+k}, v{96+2*k}, v{97+2*k}")
        a(f"v_lshlrev_b32 v{96+2*k}, 16, v{28+k}")
        a(f"v_and_b32 v{97+2*k}, 0xffff0000, v{28+k}")
    ST.stamp()
    a("s_barrier")
    ST.stamp()
    a("v_mul_u32_u24 v20, 272, v6")
    a("v_lshl_add_u32 v20, v7, 4, v20")
    a(f"s_mul_i32 s34, s3, {PSTR}")
    a("v_add_u32 v20, s34, v20")
    a.nop(12)
    for jt in range(2):
        for q in range(4):
            r = ACC + 16 * jt + 4 * q
            a(f"ds_write_b128 v20, v[{r}:{r+3}] offset:{128*jt+32*q}")
    a("s_waitcnt lgkmcnt(0)")
    a("s_barrier")
    for w in range(4):
        a(f"ds_read_b128 v[{64+8*w}:{67+8*w}], v21 offset:{PSTR*w}")
        a(f"ds_read_b128 v[{68+8*w}:{71+8*w}], v21 offset:{PSTR*w+16}")
    a("s_waitcnt lgkmcnt(0)")
    for k in range(4):
        p = 64 + 2 * k
        a(f"v_pk_add_f32 v[{p}:{p+1}], v[{p}:{p+1}], v[{p+8}:{p+9}]")
        a(f"v_pk_add_f32 v[{p+16}:{p+17}], v[{p+16}:{p+17}], v[{p+24}:{p+25}]")
        a(f"v_pk_add_f32 v[{p}:{p+1}], v[{p}:{p+1}], v[{p+16}:{p+17}]")
        a(f"v_cvt_pk_bf16_f32 v{28+k}, v{p}, v{p+1}")
        a(f"v_lshlrev_b32 v{p}, 16, v{28+k}")
        a(f"v_and_b32 v{p+1}, 0xffff0000, v{28+k}")
        a(f"v_pk_add_f32 v[{p}:{p+1}], v[{p}:{p+1}], v[{96+2*k}:{97+2*k}]")
        a(f"v_cvt_pk_bf16_f32 v{28+k}, v{p}, v{p+1}")
        a(f"v_lshlrev_b32 v{p}, 16, v{28+k}")
        a(f"v_and_b32 v{p+1}, 0xffff0000, v{28+k}")
        a(f"v_pk_add_f32 v[{p}:{p+1}], v[{p}:{p+1}], v[{104+2*k}:{105+2*k}]")
        a(f"v_cvt_pk_bf16_f32 v{28+k}, v{p}, v{p+1}")
    a("buffer_store_dwordx4 v[28:31], v4, s[20:23], s32 offen WT")
    ST.stamp(); ST.real()
    ST.flush(3, "K2_ST")
    trace_end(a, "2")
    a("s_endpgm")
    a.label("K2_CS")
    a("s_load_dwordx4 s[8:11], s[0:1], 80")
    a("s_sub_u32 s3, s2, 448")
    a("v_and_b32 v1, 7, v0")
    a("v_lshrrev_b32 v2, 3, v0")
    a("s_mov_b32 s30, 50176")
    a("v_mul_lo_u32 v3, v2, s30")
    a("v_lshl_add_u32 v3, v1, 4, v3")
    a("s_waitcnt lgkmcnt(0)")
    a("s_cmp_ge_u32 s3, 28")
    a("s_cselect_b32 s8, s10, s8")
    a("s_cselect_b32 s9, s11, s9")
    a("s_cselect_b32 s31, 28, 0")
    a("s_sub_u32 s31, s3, s31")
    a("s_lshl_b32 s31, s31, 7")
    srd(a, 12, 8, 448 * 3584)
    srd(a, 16, 6, 3584 * 4, WS_CS)
    for r in range(14):
        a(f"buffer_load_dwordx4 v[{32+4*r}:{35+4*r}], v3, s[12:15], s31 offen")
        a("s_add_u32 s31, s31, 3584")
    for i in range(8): a(f"v_mov_b32 v{8+i}, 0")
    for r in range(14):
        a(f"s_waitcnt vmcnt({13-r})")
        for k in range(4):
            a(f"v_lshlrev_b32 v16, 16, v{32+4*r+k}")
            a(f"v_and_b32 v17, 0xffff0000, v{32+4*r+k}")
            a(f"v_pk_add_f32 v[{8+2*k}:{9+2*k}], v[{8+2*k}:{9+2*k}], v[16:17]")
    a("v_lshlrev_b32 v18, 8, v2")
    a("v_lshl_add_u32 v18, v1, 5, v18")
    a("ds_write_b128 v18, v[8:11]")
    a("ds_write_b128 v18, v[12:15] offset:16")
    a("s_waitcnt lgkmcnt(0)")
    a("s_barrier")
    a("v_cmp_gt_u32 vcc, 64, v0")
    a("s_and_saveexec_b64 s[34:35], vcc")
    a("s_cbranch_execz K2_END")
    a("v_lshlrev_b32 v18, 2, v0")
    for r in range(32):
        a(f"ds_read_b32 v{32+r}, v18 offset:{256*r}")
    a("s_waitcnt lgkmcnt(0)")
    for st in (16, 8, 4, 2, 1):
        for r in range(st):
            a(f"v_add_f32 v{32+r}, v{32+r}, v{32+r+st}")
    a("s_lshl_b32 s31, s3, 8")
    a("buffer_store_dword v32, v18, s[16:19], s31 offen")
    a.label("K2_END")
    trace_end(a, "2")
    a("s_endpgm")
    return descriptor("k2_kernel", 152)
```

```python
from gen_common import *
import math, struct, os
def f2u(x): return struct.unpack("<I", struct.pack("<f", x))[0]
LOG2E = 1.4426950408889634
NST = 6
STG = 24576
PB = NST * STG
K3_LDS = PB + 8192

def gen_k3(a, fused=False):
    kernel_begin(a, "k3_kernel")
    trace_begin(a, "3")
    if fused:
        a("s_cmp_ge_u32 s2, 448")
        a("s_cbranch_scc1 K3_END")
        a("s_cmp_ge_u32 s2, 224")
        a("s_cbranch_scc1 K4_START")
    else:
        a("s_cmp_ge_u32 s2, 240")
        a("s_cbranch_scc1 K3_END")
        a("s_cmp_ge_u32 s2, 224")
        a("s_cbranch_scc1 K3_STAT")
    ST = Stamper(a, "3"); ST.real(); ST.stamp()
    a("s_load_dwordx4 s[4:7], s[0:1], 80")
    a("s_load_dwordx2 s[8:9], s[0:1], 120")
    a("s_load_dwordx2 s[60:61], s[0:1], 112")
    a("v_lshrrev_b32 v1, 6, v0")
    a("v_and_b32 v2, 63, v0")
    a("s_and_b32 s10, s2, 7")
    a("s_lshr_b32 s11, s2, 3")
    a("v_readfirstlane_b32 s3, v1")
    a("s_mul_i32 s12, s11, 37")
    a("s_lshr_b32 s12, s12, 8")
    a("s_mul_i32 s13, s12, 7")
    a("s_sub_u32 s11, s11, s13")
    a("s_and_b32 s13, s10, 1")
    a("s_mul_i32 s13, s13, 7")
    a("s_add_u32 s11, s11, s13")
    a("s_lshr_b32 s10, s10, 1")
    a("s_lshl_b32 s10, s10, 2")
    a("s_add_u32 s10, s10, s12")
    a("s_and_b32 s14, s3, 3")
    a("s_lshr_b32 s15, s3, 2")
    a("v_lshrrev_b32 v3, 4, v2")
    a("v_bfe_u32 v4, v2, 2, 2")
    a("v_xor_b32 v4, v4, v3")
    a("v_and_b32 v5, 3, v2")
    a("v_lshl_add_u32 v4, v4, 2, v5")
    a("v_lshlrev_b32 v4, 4, v4")
    a("v_mul_u32_u24 v5, 3584, v3")
    a("v_add_u32 v5, v5, v4")
    a(f"v_mul_u32_u24 v6, {RS}, v3")
    a("v_add_u32 v6, v6, v4")
    a("s_lshl_b32 s36, s3, 2")
    a("s_mul_i32 s37, s36, 3584")
    a("s_lshl_b32 s38, s11, 8")
    a("s_add_u32 s37, s37, s38")
    a(f"s_mul_i32 s39, s36, {RS}")
    a("s_lshl_b32 s38, s10, 8")
    a("s_add_u32 s39, s39, s38")
    a(f"s_sub_u32 s39, s39, {32*RS}")
    a("s_lshl_b32 s40, s3, 10")
    a("v_lshrrev_b32 v7, 5, v2")
    a("v_lshlrev_b32 v8, 4, v7")
    a("s_lshl_b32 s41, s11, 9")
    a("s_lshl_b32 s42, s14, 7")
    a("s_add_u32 s41, s41, s42")
    a("s_add_u32 s42, s41, 7168")
    CS = 160
    def dma(c):
        st = (c % NST) * STG
        a(f"s_add_u32 m0, s40, {st}")
        a(f"s_add_u32 s39, s39, {32*RS}")
        a("buffer_load_dwordx4 v5, s[16:19], s37 offen lds")
        a("s_add_u32 m0, m0, 8192")
        a("s_nop 0")
        a("buffer_load_dwordx4 v5, s[20:23], s37 offen lds")
        a("s_add_u32 m0, m0, 8192")
        a(f"s_add_u32 s37, s37, {32*3584}")
        a("buffer_load_dwordx4 v6, s[24:27], s39 offen lds")
    a("v_lshrrev_b32 v9, 4, v2")
    a("v_bfe_u32 v10, v2, 2, 2")
    a("v_and_b32 v11, 3, v2")
    a("v_lshrrev_b32 v12, 1, v9")
    a("v_lshl_add_u32 v12, v12, 3, v10")
    a("v_lshlrev_b32 v12, 8, v12")
    a("v_and_b32 v9, 1, v9")
    a("v_lshl_add_u32 v12, v9, 5, v12")
    a("v_lshl_add_u32 v12, v11, 3, v12")
    AD = 16
    a("v_xor_b32 v13, s14, v10")
    a(f"v_lshl_add_u32 v{AD}, v13, 6, v12")
    a("s_and_b32 s44, s14, 1")
    a("s_lshl_b32 s45, s15, 1")
    a("s_add_u32 s46, s45, s44")
    a("s_xor_b32 s47, s46, 1")
    a("v_xor_b32 v13, s46, v10")
    a(f"v_lshl_add_u32 v{AD+1}, v13, 6, v12")
    a("v_xor_b32 v13, s47, v10")
    a(f"v_lshl_add_u32 v{AD+2}, v13, 6, v12")
    a(f"v_add_u32 v{AD+1}, 16384, v{AD+1}")
    a(f"v_add_u32 v{AD+2}, 16384, v{AD+2}")
    for s in (1, 2):
        for i in range(3):
            a(f"v_add_u32 v{AD+3*s+i}, {2*STG*s}, v{AD+i}")
    a("v_lshrrev_b32 v9, 4, v0")
    a("v_bfe_u32 v10, v0, 2, 2")
    a("v_and_b32 v11, 3, v9")
    a("v_xor_b32 v10, v10, v11")
    a("v_and_b32 v11, 3, v0")
    a("v_lshl_add_u32 v10, v10, 2, v11")
    a("v_lshlrev_b32 v10, 4, v10")
    a("v_lshl_add_u32 v10, v9, 8, v10")
    a("v_add_u32 v192, 16384, v10")
    a(f"v_add_u32 v193, {16384+2*STG}, v10")
    a(f"v_add_u32 v194, {16384+4*STG}, v10")
    SA = 196
    for i in range(16): a(f"v_mov_b32 v{SA+i}, 0")
    a("s_waitcnt lgkmcnt(0)")
    if os.environ.get("FINE"): ST.stamp()
    srd(a, 16, 4, 448 * 3584)
    srd(a, 20, 6, 448 * 3584)
    srd(a, 24, 8, 448 * RS, WS_HT)
    srd(a, 28, 8, 3584 * 4, WS_CS)
    srd(a, 32, 8, 224 * AC, WS_ACT)
    srd(a, 64, 8, 2048 * 8, WS_ST)
    dma(0); dma(1)
    if os.environ.get("FINE"): ST.stamp()
    ACC = 32
    FR = 96
    LG = Lgkm(a)
    def rd_piece(c, ks, p, i):
        st = c % NST
        base = AD + 3 * (st // 2)
        off = (st % 2) * STG + ks * 16 * 256
        f = FR + 16 * p
        if i == 4:
            a(f"ds_read_b128 v[{212+4*(c%2)}:{215+4*(c%2)}], v{192 + st // 2} offset:{(st % 2) * STG}")
            LG.issue(("S", c)); return
        ar, o2 = ((base, 0), (base, 8192), (base + 1, 0), (base + 2, 0))[i]
        a(f"ds_read_b64_tr_b16 v[{f+4*i}:{f+4*i+1}], v{ar} offset:{off+o2}")
        a(f"ds_read_b64_tr_b16 v[{f+4*i+2}:{f+4*i+3}], v{ar} offset:{off+o2+1024}")
        LG.issue((c, ks, i, 0)); LG.issue((c, ks, i, 1))
    def mm(c, ks, first, stat, nxt):
        p = ks
        f = FR + 16 * p
        n = 0
        for s in range(2):
            for g in range(2):
                need = [(c, ks, g, 0), (c, ks, g, 1), (c, ks, 2 + s, 0), (c, ks, 2 + s, 1)]
                if stat is not None: need.append(("S", stat[2]))
                LG.need(need)
                d = ACC + 32 * s + 16 * g
                cc = "0" if first else f"v[{d}:{d+15}]"
                a(f"v_mfma_f32_32x32x16_bf16 v[{d}:{d+15}], v[{f+4*g}:{f+4*g+3}], v[{f+8+4*s}:{f+8+4*s+3}], {cc}")
                if nxt is not None:
                    for i in nxt[3][n]: rd_piece(nxt[0], nxt[1], nxt[2], i)
                if stat is not None:
                    raw, els, _ = stat
                    for e in els[n]:
                        t = 220 + (e % 4)
                        k = e // 2
                        if e % 2 == 0: a(f"v_lshlrev_b32 v{t}, 16, v{raw+k}")
                        else: a(f"v_and_b32 v{t}, 0xffff0000, v{raw+k}")
                        a(f"v_add_f32 v{SA+e}, v{SA+e}, v{t}")
                        a(f"v_fmac_f32 v{SA+8+e}, v{t}, v{t}")
                n += 1
    NC = 14
    def dma_state_save(): return None
    a("s_cmp_ge_u32 s3, 4")
    a("s_cselect_b64 vcc, -1, 0")
    if os.environ.get("PRIO3"):
        a("s_cbranch_scc0 K3_NP")
        a("s_setprio 1")
        a.label("K3_NP")
    def cs_loads():
        a("s_lshl_b32 s49, s10, 2")
        a("v_mov_b32 v10, s49")
        a.label("K3_POLL")
        a("global_load_dword v11, v10, s[60:61] sc1")
        a("s_waitcnt vmcnt(0)")
        a("v_readfirstlane_b32 s49, v11")
        a("s_nop 3")
        a("s_cmp_lg_u32 s49, 0")
        a("s_cbranch_scc1 K3_PD")
        a("s_sleep 2")
        a("s_branch K3_POLL")
        a.label("K3_PD")
        a("v_and_b32 v15, 31, v2")
        a("v_lshlrev_b32 v12, 3, v15")
        a("s_lshl_b32 s49, s10, 10")
        a("s_lshl_b32 s62, s46, 8")
        a("s_add_u32 s62, s62, s49")
        a("buffer_load_dwordx2 v[116:117], v12, s[64:67], s62 offen sc1") if False else a("buffer_load_dwordx2 v[200:201], v12, s[64:67], s62 offen sc1")
        a("s_lshl_b32 s62, s47, 8")
        a("s_add_u32 s62, s62, s49")
        a("buffer_load_dwordx2 v[202:203], v12, s[64:67], s62 offen sc1")
        for q in range(4):
            a(f"buffer_load_dwordx4 v[{CS+4*q}:{CS+4*q+3}], v8, s[28:31], s41 offen offset:{32*q}")
            a(f"buffer_load_dwordx4 v[{CS+16+4*q}:{CS+16+4*q+3}], v8, s[28:31], s42 offen offset:{32*q}")
    if os.environ.get("DEEP3"):
        sched = {c: ([c + 5] if c + 5 < NC else []) for c in range(NC)}
        issued = [0, 1, 2, 3, 4]
        for k in (2, 3, 4): dma(k)
        a("s_waitcnt vmcnt(12)")
    else:
        sched = {0: [2, 3], 1: [4, 5], 2: [6, 7]}
        for c in range(3, NC): sched[c] = [c + 5] if c + 5 < NC else []
        issued = [0, 1]
        a("s_waitcnt vmcnt(3)")
    a("s_barrier")
    ST.stamp()
    for i in (0, 2, 1, 3): rd_piece(0, 0, 0, i)
    def prereduce():
        a("s_nop 1")
        for i in range(8): a(f"v_permlane32_swap_b32 v{SA+i}, v{SA+8+i}")
        a("s_nop 1")
        for i in range(8): a(f"v_add_f32 v{SA+i}, v{SA+i}, v{SA+8+i}")
        a("s_nop 1")
        for i in range(4): a(f"v_permlane16_swap_b32 v{SA+i}, v{SA+4+i}")
        a("s_nop 1")
        for i in range(4): a(f"v_add_f32 v{SA+i}, v{SA+i}, v{SA+4+i}")
        a("v_and_b32 v10, 15, v2")
        a("v_lshrrev_b32 v11, 4, v2")
        a("v_lshlrev_b32 v10, 5, v10")
        a("v_and_b32 v12, 1, v11")
        a("v_lshl_add_u32 v10, v12, 4, v10")
        a("v_lshrrev_b32 v11, 1, v11")
        a("v_lshl_add_u32 v10, v11, 9, v10")
        a(f"s_add_u32 s49, s40, {PB}")
        a("v_add_u32 v10, s49, v10")
        a(f"ds_write_b128 v10, v[{SA}:{SA+3}]")
        a("v_and_b32 v15, 31, v2")
        a("s_lshl_b32 s49, s46, 7")
        a(f"s_add_u32 s49, s49, {PB}")
        a("v_lshlrev_b32 v28, 2, v15")
        a("v_add_u32 v28, s49, v28")
        a("s_lshl_b32 s49, s47, 7")
        a(f"s_add_u32 s49, s49, {PB}")
        a("v_lshlrev_b32 v29, 2, v15")
        a("v_add_u32 v29, s49, v29")
    if os.environ.get("TWICE"):
        a("s_mov_b32 s90, 2")
        a.label("K3_AGAIN")
    for c in range(NC):
        raw = 212 + 4 * (c % 2)
        if c + 1 < NC:
            nw = 3 * (len(issued) - 1 - issued.index(c + 1))
            a(f"s_cbranch_vccz K3_BB{c}")
            a(f"s_waitcnt vmcnt({nw})")
            a("s_barrier")
            a.label(f"K3_BB{c}")
            mm(c, 0, c == 0, None, (c, 1, 1, [[0], [2], [1], [3]]))
            a(f"s_cbranch_vccnz K3_BA{c}")
            a(f"s_waitcnt vmcnt({nw})")
            a("s_barrier")
            a.label(f"K3_BA{c}")
            for k in sched[c]:
                dma(k); issued.append(k)
            if c + 1 == NC - 1: cs_loads()
            mm(c, 1, False, None, (c + 1, 0, 0, [[0], [2], [1], [3]]))
        else:
            mm(c, 0, False, None, (c, 1, 1, [[0], [2], [1], [3]]))
            mm(c, 1, False, None, None)
        if c in (0, 6): ST.stamp()
    ST.stamp()
    if os.environ.get("TWICE"):
        a("s_sub_u32 s90, s90, 1")
        a("s_cmp_lg_u32 s90, 0")
        a("s_cbranch_scc1 K3_AGAIN")
    a("s_waitcnt vmcnt(0)")
    for s_ in range(2):
        a(f"v_mov_b32 v{116+2*s_}, v{200+2*s_}")
        a(f"v_mov_b32 v{117+2*s_}, v{201+2*s_}")
    ST.stamp()
    c0 = -2.0 * math.sqrt(2 / math.pi) * LOG2E
    c1 = c0 * 0.044715
    a(f"s_mov_b32 s50, 0x{f2u(c0):08x}"); a(f"s_mov_b32 s51, 0x{f2u(c0):08x}")
    a(f"s_mov_b32 s52, 0x{f2u(c1):08x}"); a(f"s_mov_b32 s53, 0x{f2u(c1):08x}")
    a("s_mov_b32 s54, 1.0"); a("s_mov_b32 s55, 1.0")
    a("s_lshl_b32 s56, s11, 4")
    a("s_lshl_b32 s57, s14, 2")
    a("s_add_u32 s56, s56, s57")
    a(f"s_mul_i32 s56, s56, {AC}")
    a("s_lshl_b32 s57, s10, 11")
    a("s_add_u32 s56, s56, s57")
    a("v_lshlrev_b32 v28, 4, v15")
    a(f"v_mul_u32_u24 v29, {AC}, v7")
    a("v_add_u32 v28, v28, v29")
    a("s_waitcnt vmcnt(0)")
    T = 120
    for s in range(2):
        M, R = 116 + 2 * s, 117 + 2 * s
        a(f"s_lshl_b32 s58, s{46+s}, 9")
        a("s_add_u32 s58, s58, s56")
        for q in range(4):
            o = 144 + 2 * q + 8 * s
            for h in range(2):
                g = ACC + 32 * s + 4 * q + 2 * h
                u = g + 16
                cg = CS + 4 * q + 2 * h; cu = cg + 16
                t = T + 8 * h
                a(f"v_pk_fma_f32 v[{g}:{g+1}], v[{cg}:{cg+1}], v[{M}:{M+1}], v[{g}:{g+1}] op_sel_hi:[1,0,1]")
                a(f"v_pk_fma_f32 v[{u}:{u+1}], v[{cu}:{cu+1}], v[{M}:{M+1}], v[{u}:{u+1}] op_sel_hi:[1,0,1]")
                a(f"v_pk_mul_f32 v[{g}:{g+1}], v[{g}:{g+1}], v[{M}:{M+1}] op_sel:[0,1] op_sel_hi:[1,1]")
                a(f"v_pk_mul_f32 v[{u}:{u+1}], v[{u}:{u+1}], v[{M}:{M+1}] op_sel:[0,1] op_sel_hi:[1,1]")
                a(f"v_pk_mul_f32 v[{t}:{t+1}], v[{g}:{g+1}], v[{g}:{g+1}]")
                a(f"v_pk_fma_f32 v[{t}:{t+1}], v[{t}:{t+1}], s[52:53], v[{t+2}:{t+3}]") if False else None
                a(f"v_pk_mul_f32 v[{t}:{t+1}], v[{t}:{t+1}], s[52:53]")
                a(f"v_pk_add_f32 v[{t}:{t+1}], v[{t}:{t+1}], s[50:51]")
                a(f"v_pk_mul_f32 v[{t}:{t+1}], v[{t}:{t+1}], v[{g}:{g+1}]")
                a(f"v_exp_f32 v{t}, v{t}")
                a(f"v_exp_f32 v{t+1}, v{t+1}")
                a(f"v_pk_mul_f32 v[{u}:{u+1}], v[{u}:{u+1}], v[{g}:{g+1}]")
                a(f"v_pk_add_f32 v[{t}:{t+1}], v[{t}:{t+1}], s[54:55]")
                a(f"v_rcp_f32 v{t}, v{t}")
                a(f"v_rcp_f32 v{t+1}, v{t+1}")
                a("s_nop 0")
                a(f"v_pk_mul_f32 v[{u}:{u+1}], v[{u}:{u+1}], v[{t}:{t+1}]")
                a(f"v_cvt_pk_bf16_f32 v{o+h}, v{u}, v{u+1}")
            if q % 2 == 1:
                qp = q // 2
                o = 144 + 4 * qp + 8 * s
                a("s_nop 1")
                a(f"v_permlane32_swap_b32 v{o}, v{o+2}")
                a(f"v_permlane32_swap_b32 v{o+1}, v{o+3}")
                a(f"s_add_u32 s59, s58, {qp*2*AC}")
                a("s_nop 0")
                a(f"buffer_store_dwordx4 v[{o}:{o+3}], v28, s[32:35], s59 offen WT")
    if fused:
        a("s_load_dwordx2 s[4:5], s[0:1], 112")
        a("s_waitcnt vmcnt(0)")
        a("s_barrier")
        a("v_cmp_eq_u32 vcc, 0, v0")
        a("s_and_saveexec_b64 s[8:9], vcc")
        a("s_cbranch_execz K3_END")
        a("s_lshl_b32 s10, s10, 4")
        a("v_mov_b32 v1, s10")
        a("v_mov_b32 v2, 1")
        a("s_waitcnt lgkmcnt(0)")
        a("global_atomic_add v1, v2, s[4:5] sc1")
    ST.stamp(); ST.real()
    ST.flush(3, "K3_ST")
    a.label("K3_END")
    trace_end(a, "3")
    a("s_endpgm")
    a.label("K3_STAT")
    a("s_load_dwordx2 s[8:9], s[0:1], 120")
    a("s_load_dwordx2 s[60:61], s[0:1], 112")
    a("s_sub_u32 s10, s2, 224")
    a("v_lshrrev_b32 v1, 6, v0")
    a("v_and_b32 v2, 63, v0")
    a("v_lshrrev_b32 v3, 4, v0")
    a("v_and_b32 v4, 15, v0")
    a("v_readfirstlane_b32 s3, v1")
    a(f"v_mul_u32_u24 v5, {14*RS}, v3")
    a("v_lshl_add_u32 v5, v4, 4, v5")
    a("s_lshl_b32 s36, s10, 8")
    a("s_waitcnt lgkmcnt(0)")
    srd(a, 24, 8, 448 * RS, WS_HT)
    srd(a, 64, 8, 2048 * 8, WS_ST)
    for i in range(14):
        a(f"buffer_load_dwordx4 v[{32+4*i}:{35+4*i}], v5, s[24:27], s36 offen")
        a(f"s_add_u32 s36, s36, {RS}")
    SB = 96
    for i in range(16): a(f"v_mov_b32 v{SB+i}, 0")
    for i in range(14):
        a(f"s_waitcnt vmcnt({13-i})")
        for k in range(4):
            a(f"v_lshlrev_b32 v{112+2*k}, 16, v{32+4*i+k}")
            a(f"v_and_b32 v{113+2*k}, 0xffff0000, v{32+4*i+k}")
        for e in range(8):
            a(f"v_add_f32 v{SB+e}, v{SB+e}, v{112+e}")
            a(f"v_fmac_f32 v{SB+8+e}, v{112+e}, v{112+e}")
    a("s_nop 1")
    for i in range(8): a(f"v_permlane32_swap_b32 v{SB+i}, v{SB+8+i}")
    a("s_nop 1")
    for i in range(8): a(f"v_add_f32 v{SB+i}, v{SB+i}, v{SB+8+i}")
    a("s_nop 1")
    for i in range(4): a(f"v_permlane16_swap_b32 v{SB+i}, v{SB+4+i}")
    a("s_nop 1")
    for i in range(4): a(f"v_add_f32 v{SB+i}, v{SB+i}, v{SB+4+i}")
    a("v_lshrrev_b32 v11, 4, v2")
    a("v_lshlrev_b32 v10, 5, v4")
    a("v_and_b32 v12, 1, v11")
    a("v_lshl_add_u32 v10, v12, 4, v10")
    a("v_lshrrev_b32 v11, 1, v11")
    a("v_lshl_add_u32 v10, v11, 9, v10")
    a("s_lshl_b32 s40, s3, 10")
    a("v_add_u32 v10, s40, v10")
    a(f"ds_write_b128 v10, v[{SB}:{SB+3}]")
    a("s_waitcnt lgkmcnt(0)")
    a("s_barrier")
    a("s_cmp_lt_u32 s3, 2")
    a("s_cbranch_scc0 K3_ST2")
    a("v_lshlrev_b32 v10, 2, v0")
    for w in range(8):
        a(f"ds_read_b32 v{32+2*w}, v10 offset:{1024*w}")
        a(f"ds_read_b32 v{33+2*w}, v10 offset:{1024*w+512}")
    a("s_waitcnt lgkmcnt(0)")
    for st in (8, 4, 2):
        for i in range(0, st, 2):
            a(f"v_pk_add_f32 v[{32+i}:{33+i}], v[{32+i}:{33+i}], v[{32+i+st}:{33+i+st}]")
    S, Q, M, R = 32, 33, 34, 35
    a(f"v_mul_f32 v{S}, 0x{f2u(1/448.0):08x}, v{S}")
    a(f"v_mul_f32 v{Q}, 0x{f2u(1/448.0):08x}, v{Q}")
    a(f"v_fma_f32 v{Q}, -v{S}, v{S}, v{Q}")
    a(f"v_max_f32 v{Q}, 0, v{Q}")
    a(f"v_cvt_pk_bf16_f32 v{Q}, v{Q}, v{S}")
    a(f"v_and_b32 v{M}, 0xffff0000, v{Q}")
    a(f"v_lshlrev_b32 v{Q}, 16, v{Q}")
    a(f"v_add_f32 v{Q}, 0x{f2u(1e-5):08x}, v{Q}")
    a(f"v_cvt_pk_bf16_f32 v{Q}, v{Q}, v{Q}")
    a(f"v_lshlrev_b32 v{Q}, 16, v{Q}")
    a(f"v_sqrt_f32 v{Q}, v{Q}")
    a("s_nop 0")
    a(f"v_cvt_pk_bf16_f32 v{Q}, v{Q}, v{Q}")
    a(f"v_lshlrev_b32 v{Q}, 16, v{Q}")
    a(f"v_rcp_f32 v{R}, v{Q}")
    a("s_nop 0")
    a(f"v_sub_f32 v{M}, 0, v{M}")
    a("v_lshlrev_b32 v10, 3, v0")
    a("s_lshl_b32 s49, s10, 10")
    a(f"buffer_store_dwordx2 v[{M}:{R}], v10, s[64:67], s49 offen sc1")
    a("s_waitcnt vmcnt(0)")
    a.label("K3_ST2")
    a("s_barrier")
    a("v_cmp_eq_u32 vcc, 0, v0")
    a("s_and_saveexec_b64 s[8:9], vcc")
    a("s_cbranch_execz K3_ST3")
    a("s_lshl_b32 s10, s10, 2")
    a("v_mov_b32 v1, s10")
    a("v_mov_b32 v2, 1")
    a("global_atomic_add v1, v2, s[60:61] sc1")
    a.label("K3_ST3")
    a("s_endpgm")
    if fused:
        import gen_k4
        gen_k4.gen_k4(a, fused=True)
    return descriptor("k3_kernel", 232)
```

```python
from gen_common import *
import math, struct, os
def f2u(x): return struct.unpack("<I", struct.pack("<f", x))[0]
LOG2E = 1.4426950408889634
NST = 6
STG = 24576
PB = NST * STG
K3_LDS = PB + 8192

def gen_k3(a, fused=False):
    kernel_begin(a, "k3_kernel")
    trace_begin(a, "3")
    if fused:
        a("s_cmp_ge_u32 s2, 448")
        a("s_cbranch_scc1 K3_END")
        a("s_cmp_ge_u32 s2, 224")
        a("s_cbranch_scc1 K4_START")
    else:
        a("s_cmp_ge_u32 s2, 240")
        a("s_cbranch_scc1 K3_END")
        a("s_cmp_lt_u32 s2, 16")
        a("s_cbranch_scc1 K3_STAT")
        a("s_sub_u32 s2, s2, 16")
    ST = Stamper(a, "3"); ST.real(); ST.stamp()
    a("s_load_dwordx4 s[4:7], s[0:1], 80")
    a("s_load_dwordx2 s[8:9], s[0:1], 120")
    a("s_load_dwordx2 s[60:61], s[0:1], 112")
    a("v_lshrrev_b32 v1, 6, v0")
    a("v_and_b32 v2, 63, v0")
    a("s_and_b32 s10, s2, 7")
    a("s_lshr_b32 s11, s2, 3")
    a("v_readfirstlane_b32 s3, v1")
    a("s_mul_i32 s12, s11, 37")
    a("s_lshr_b32 s12, s12, 8")
    a("s_mul_i32 s13, s12, 7")
    a("s_sub_u32 s11, s11, s13")
    a("s_and_b32 s13, s10, 1")
    a("s_mul_i32 s13, s13, 7")
    a("s_add_u32 s11, s11, s13")
    a("s_lshr_b32 s10, s10, 1")
    a("s_lshl_b32 s10, s10, 2")
    a("s_add_u32 s10, s10, s12")
    a("s_and_b32 s14, s3, 3")
    a("s_lshr_b32 s15, s3, 2")
    a("v_lshrrev_b32 v3, 4, v2")
    a("v_bfe_u32 v4, v2, 2, 2")
    a("v_xor_b32 v4, v4, v3")
    a("v_and_b32 v5, 3, v2")
    a("v_lshl_add_u32 v4, v4, 2, v5")
    a("v_lshlrev_b32 v4, 4, v4")
    a("v_mul_u32_u24 v5, 3584, v3")
    a("v_add_u32 v5, v5, v4")
    a(f"v_mul_u32_u24 v6, {RS}, v3")
    a("v_add_u32 v6, v6, v4")
    a("s_lshl_b32 s36, s3, 2")
    a("s_mul_i32 s37, s36, 3584")
    a("s_lshl_b32 s38, s11, 8")
    a("s_add_u32 s37, s37, s38")
    a(f"s_mul_i32 s39, s36, {RS}")
    a("s_lshl_b32 s38, s10, 8")
    a("s_add_u32 s39, s39, s38")
    a(f"s_sub_u32 s39, s39, {32*RS}")
    a("s_lshl_b32 s40, s3, 10")
    a("v_lshrrev_b32 v7, 5, v2")
    a("v_lshlrev_b32 v8, 4, v7")
    a("s_lshl_b32 s41, s11, 9")
    a("s_lshl_b32 s42, s14, 7")
    a("s_add_u32 s41, s41, s42")
    a("s_add_u32 s42, s41, 7168")
    CS = 160
    def dma(c):
        st = (c % NST) * STG
        a(f"s_add_u32 m0, s40, {st}")
        a(f"s_add_u32 s39, s39, {32*RS}")
        a("buffer_load_dwordx4 v5, s[16:19], s37 offen lds")
        a("s_add_u32 m0, m0, 8192")
        a("s_nop 0")
        a("buffer_load_dwordx4 v5, s[20:23], s37 offen lds")
        a("s_add_u32 m0, m0, 8192")
        a(f"s_add_u32 s37, s37, {32*3584}")
        a("buffer_load_dwordx4 v6, s[24:27], s39 offen lds")
    a("v_lshrrev_b32 v9, 4, v2")
    a("v_bfe_u32 v10, v2, 2, 2")
    a("v_and_b32 v11, 3, v2")
    a("v_lshrrev_b32 v12, 1, v9")
    a("v_lshl_add_u32 v12, v12, 3, v10")
    a("v_lshlrev_b32 v12, 8, v12")
    a("v_and_b32 v9, 1, v9")
    a("v_lshl_add_u32 v12, v9, 5, v12")
    a("v_lshl_add_u32 v12, v11, 3, v12")
    AD = 16
    a("v_xor_b32 v13, s14, v10")
    a(f"v_lshl_add_u32 v{AD}, v13, 6, v12")
    a("s_and_b32 s44, s14, 1")
    a("s_lshl_b32 s45, s15, 1")
    a("s_add_u32 s46, s45, s44")
    a("s_xor_b32 s47, s46, 1")
    a("v_xor_b32 v13, s46, v10")
    a(f"v_lshl_add_u32 v{AD+1}, v13, 6, v12")
    a("v_xor_b32 v13, s47, v10")
    a(f"v_lshl_add_u32 v{AD+2}, v13, 6, v12")
    a(f"v_add_u32 v{AD+1}, 16384, v{AD+1}")
    a(f"v_add_u32 v{AD+2}, 16384, v{AD+2}")
    for s in (1, 2):
        for i in range(3):
            a(f"v_add_u32 v{AD+3*s+i}, {2*STG*s}, v{AD+i}")
    a("v_lshrrev_b32 v9, 4, v0")
    a("v_bfe_u32 v10, v0, 2, 2")
    a("v_and_b32 v11, 3, v9")
    a("v_xor_b32 v10, v10, v11")
    a("v_and_b32 v11, 3, v0")
    a("v_lshl_add_u32 v10, v10, 2, v11")
    a("v_lshlrev_b32 v10, 4, v10")
    a("v_lshl_add_u32 v10, v9, 8, v10")
    a("v_add_u32 v192, 16384, v10")
    a(f"v_add_u32 v193, {16384+2*STG}, v10")
    a(f"v_add_u32 v194, {16384+4*STG}, v10")
    SA = 196
    for i in range(16): a(f"v_mov_b32 v{SA+i}, 0")
    a("s_waitcnt lgkmcnt(0)")
    if os.environ.get("FINE"): ST.stamp()
    srd(a, 16, 4, 448 * 3584)
    srd(a, 20, 6, 448 * 3584)
    srd(a, 24, 8, 448 * RS, WS_HT)
    srd(a, 28, 8, 3584 * 4, WS_CS)
    srd(a, 32, 8, 224 * AC, WS_ACT)
    srd(a, 64, 8, 2048 * 8, WS_ST)
    dma(0); dma(1)
    if os.environ.get("FINE"): ST.stamp()
    ACC = 32
    FR = 96
    LG = Lgkm(a)
    def rd_piece(c, ks, p, i):
        st = c % NST
        base = AD + 3 * (st // 2)
        off = (st % 2) * STG + ks * 16 * 256
        f = FR + 16 * p
        if i == 4:
            a(f"ds_read_b128 v[{212+4*(c%2)}:{215+4*(c%2)}], v{192 + st // 2} offset:{(st % 2) * STG}")
            LG.issue(("S", c)); return
        ar, o2 = ((base, 0), (base, 8192), (base + 1, 0), (base + 2, 0))[i]
        a(f"ds_read_b64_tr_b16 v[{f+4*i}:{f+4*i+1}], v{ar} offset:{off+o2}")
        a(f"ds_read_b64_tr_b16 v[{f+4*i+2}:{f+4*i+3}], v{ar} offset:{off+o2+1024}")
        LG.issue((c, ks, i, 0)); LG.issue((c, ks, i, 1))
    def mm(c, ks, first, stat, nxt):
        p = ks
        f = FR + 16 * p
        n = 0
        for s in range(2):
            for g in range(2):
                need = [(c, ks, g, 0), (c, ks, g, 1), (c, ks, 2 + s, 0), (c, ks, 2 + s, 1)]
                if stat is not None: need.append(("S", stat[2]))
                LG.need(need)
                d = ACC + 32 * s + 16 * g
                cc = "0" if first else f"v[{d}:{d+15}]"
                a(f"v_mfma_f32_32x32x16_bf16 v[{d}:{d+15}], v[{f+4*g}:{f+4*g+3}], v[{f+8+4*s}:{f+8+4*s+3}], {cc}")
                if nxt is not None:
                    for i in nxt[3][n]: rd_piece(nxt[0], nxt[1], nxt[2], i)
                if stat is not None:
                    raw, els, _ = stat
                    for e in els[n]:
                        t = 220 + (e % 4)
                        k = e // 2
                        if e % 2 == 0: a(f"v_lshlrev_b32 v{t}, 16, v{raw+k}")
                        else: a(f"v_and_b32 v{t}, 0xffff0000, v{raw+k}")
                        a(f"v_add_f32 v{SA+e}, v{SA+e}, v{t}")
                        a(f"v_fmac_f32 v{SA+8+e}, v{t}, v{t}")
                n += 1
    NC = 14
    def dma_state_save(): return None
    a("s_cmp_ge_u32 s3, 4")
    a("s_cselect_b64 vcc, -1, 0")
    if os.environ.get("PRIO3"):
        a("s_cbranch_scc0 K3_NP")
        a("s_setprio 1")
        a.label("K3_NP")
    def cs_loads():
        a("s_lshl_b32 s49, s10, 2")
        a("v_mov_b32 v10, s49")
        a.label("K3_POLL")
        a("global_load_dword v11, v10, s[60:61] sc1")
        a("s_waitcnt vmcnt(0)")
        a("v_readfirstlane_b32 s49, v11")
        a("s_nop 3")
        a("s_cmp_lg_u32 s49, 0")
        a("s_cbranch_scc1 K3_PD")
        a("s_sleep 2")
        a("s_branch K3_POLL")
        a.label("K3_PD")
        a("v_and_b32 v15, 31, v2")
        a("v_lshlrev_b32 v12, 3, v15")
        a("s_lshl_b32 s49, s10, 10")
        a("s_lshl_b32 s62, s46, 8")
        a("s_add_u32 s62, s62, s49")
        a("buffer_load_dwordx2 v[116:117], v12, s[64:67], s62 offen sc1") if False else a("buffer_load_dwordx2 v[200:201], v12, s[64:67], s62 offen sc1")
        a("s_lshl_b32 s62, s47, 8")
        a("s_add_u32 s62, s62, s49")
        a("buffer_load_dwordx2 v[202:203], v12, s[64:67], s62 offen sc1")
        for q in range(4):
            a(f"buffer_load_dwordx4 v[{CS+4*q}:{CS+4*q+3}], v8, s[28:31], s41 offen offset:{32*q}")
            a(f"buffer_load_dwordx4 v[{CS+16+4*q}:{CS+16+4*q+3}], v8, s[28:31], s42 offen offset:{32*q}")
    if os.environ.get("DEEP3"):
        sched = {c: ([c + 5] if c + 5 < NC else []) for c in range(NC)}
        issued = [0, 1, 2, 3, 4]
        for k in (2, 3, 4): dma(k)
        a("s_waitcnt vmcnt(12)")
    else:
        sched = {0: [2, 3], 1: [4, 5], 2: [6, 7]}
        for c in range(3, NC): sched[c] = [c + 5] if c + 5 < NC else []
        issued = [0, 1]
        a("s_waitcnt vmcnt(3)")
    a("s_barrier")
    ST.stamp()
    for i in (0, 2, 1, 3): rd_piece(0, 0, 0, i)
    def prereduce():
        a("s_nop 1")
        for i in range(8): a(f"v_permlane32_swap_b32 v{SA+i}, v{SA+8+i}")
        a("s_nop 1")
        for i in range(8): a(f"v_add_f32 v{SA+i}, v{SA+i}, v{SA+8+i}")
        a("s_nop 1")
        for i in range(4): a(f"v_permlane16_swap_b32 v{SA+i}, v{SA+4+i}")
        a("s_nop 1")
        for i in range(4): a(f"v_add_f32 v{SA+i}, v{SA+i}, v{SA+4+i}")
        a("v_and_b32 v10, 15, v2")
        a("v_lshrrev_b32 v11, 4, v2")
        a("v_lshlrev_b32 v10, 5, v10")
        a("v_and_b32 v12, 1, v11")
        a("v_lshl_add_u32 v10, v12, 4, v10")
        a("v_lshrrev_b32 v11, 1, v11")
        a("v_lshl_add_u32 v10, v11, 9, v10")
        a(f"s_add_u32 s49, s40, {PB}")
        a("v_add_u32 v10, s49, v10")
        a(f"ds_write_b128 v10, v[{SA}:{SA+3}]")
        a("v_and_b32 v15, 31, v2")
        a("s_lshl_b32 s49, s46, 7")
        a(f"s_add_u32 s49, s49, {PB}")
        a("v_lshlrev_b32 v28, 2, v15")
        a("v_add_u32 v28, s49, v28")
        a("s_lshl_b32 s49, s47, 7")
        a(f"s_add_u32 s49, s49, {PB}")
        a("v_lshlrev_b32 v29, 2, v15")
        a("v_add_u32 v29, s49, v29")
    if os.environ.get("TWICE"):
        a("s_mov_b32 s90, 2")
        a.label("K3_AGAIN")
    for c in range(NC):
        raw = 212 + 4 * (c % 2)
        if c + 1 < NC:
            nw = 3 * (len(issued) - 1 - issued.index(c + 1))
            a(f"s_cbranch_vccz K3_BB{c}")
            a(f"s_waitcnt vmcnt({nw})")
            a("s_barrier")
            a.label(f"K3_BB{c}")
            mm(c, 0, c == 0, None, (c, 1, 1, [[0], [2], [1], [3]]))
            a(f"s_cbranch_vccnz K3_BA{c}")
            a(f"s_waitcnt vmcnt({nw})")
            a("s_barrier")
            a.label(f"K3_BA{c}")
            for k in sched[c]:
                dma(k); issued.append(k)
            if c + 1 == NC - 1: cs_loads()
            mm(c, 1, False, None, (c + 1, 0, 0, [[0], [2], [1], [3]]))
        else:
            mm(c, 0, False, None, (c, 1, 1, [[0], [2], [1], [3]]))
            mm(c, 1, False, None, None)
        if c in (0, 6): ST.stamp()
    ST.stamp()
    if os.environ.get("TWICE"):
        a("s_sub_u32 s90, s90, 1")
        a("s_cmp_lg_u32 s90, 0")
        a("s_cbranch_scc1 K3_AGAIN")
    a("s_waitcnt vmcnt(0)")
    for s_ in range(2):
        a(f"v_mov_b32 v{116+2*s_}, v{200+2*s_}")
        a(f"v_mov_b32 v{117+2*s_}, v{201+2*s_}")
    ST.stamp()
    c0 = -2.0 * math.sqrt(2 / math.pi) * LOG2E
    c1 = c0 * 0.044715
    a(f"s_mov_b32 s50, 0x{f2u(c0):08x}"); a(f"s_mov_b32 s51, 0x{f2u(c0):08x}")
    a(f"s_mov_b32 s52, 0x{f2u(c1):08x}"); a(f"s_mov_b32 s53, 0x{f2u(c1):08x}")
    a("s_mov_b32 s54, 1.0"); a("s_mov_b32 s55, 1.0")
    a("s_lshl_b32 s56, s11, 4")
    a("s_lshl_b32 s57, s14, 2")
    a("s_add_u32 s56, s56, s57")
    a(f"s_mul_i32 s56, s56, {AC}")
    a("s_lshl_b32 s57, s10, 11")
    a("s_add_u32 s56, s56, s57")
    a("v_lshlrev_b32 v28, 4, v15")
    a(f"v_mul_u32_u24 v29, {AC}, v7")
    a("v_add_u32 v28, v28, v29")
    a("s_waitcnt vmcnt(0)")
    T = 120
    for s in range(2):
        M, R = 116 + 2 * s, 117 + 2 * s
        a(f"s_lshl_b32 s58, s{46+s}, 9")
        a("s_add_u32 s58, s58, s56")
        for q in range(4):
            o = 144 + 2 * q + 8 * s
            for h in range(2):
                g = ACC + 32 * s + 4 * q + 2 * h
                u = g + 16
                cg = CS + 4 * q + 2 * h; cu = cg + 16
                t = T + 8 * h
                a(f"v_pk_fma_f32 v[{g}:{g+1}], v[{cg}:{cg+1}], v[{M}:{M+1}], v[{g}:{g+1}] op_sel_hi:[1,0,1]")
                a(f"v_pk_fma_f32 v[{u}:{u+1}], v[{cu}:{cu+1}], v[{M}:{M+1}], v[{u}:{u+1}] op_sel_hi:[1,0,1]")
                a(f"v_pk_mul_f32 v[{g}:{g+1}], v[{g}:{g+1}], v[{M}:{M+1}] op_sel:[0,1] op_sel_hi:[1,1]")
                a(f"v_pk_mul_f32 v[{u}:{u+1}], v[{u}:{u+1}], v[{M}:{M+1}] op_sel:[0,1] op_sel_hi:[1,1]")
                a(f"v_pk_mul_f32 v[{t}:{t+1}], v[{g}:{g+1}], v[{g}:{g+1}]")
                a(f"v_pk_fma_f32 v[{t}:{t+1}], v[{t}:{t+1}], s[52:53], v[{t+2}:{t+3}]") if False else None
                a(f"v_pk_mul_f32 v[{t}:{t+1}], v[{t}:{t+1}], s[52:53]")
                a(f"v_pk_add_f32 v[{t}:{t+1}], v[{t}:{t+1}], s[50:51]")
                a(f"v_pk_mul_f32 v[{t}:{t+1}], v[{t}:{t+1}], v[{g}:{g+1}]")
                a(f"v_exp_f32 v{t}, v{t}")
                a(f"v_exp_f32 v{t+1}, v{t+1}")
                a(f"v_pk_mul_f32 v[{u}:{u+1}], v[{u}:{u+1}], v[{g}:{g+1}]")
                a(f"v_pk_add_f32 v[{t}:{t+1}], v[{t}:{t+1}], s[54:55]")
                a(f"v_rcp_f32 v{t}, v{t}")
                a(f"v_rcp_f32 v{t+1}, v{t+1}")
                a("s_nop 0")
                a(f"v_pk_mul_f32 v[{u}:{u+1}], v[{u}:{u+1}], v[{t}:{t+1}]")
                a(f"v_cvt_pk_bf16_f32 v{o+h}, v{u}, v{u+1}")
            if q % 2 == 1:
                qp = q // 2
                o = 144 + 4 * qp + 8 * s
                a("s_nop 1")
                a(f"v_permlane32_swap_b32 v{o}, v{o+2}")
                a(f"v_permlane32_swap_b32 v{o+1}, v{o+3}")
                a(f"s_add_u32 s59, s58, {qp*2*AC}")
                a("s_nop 0")
                a(f"buffer_store_dwordx4 v[{o}:{o+3}], v28, s[32:35], s59 offen WT")
    if fused:
        a("s_load_dwordx2 s[4:5], s[0:1], 112")
        a("s_waitcnt vmcnt(0)")
        a("s_barrier")
        a("v_cmp_eq_u32 vcc, 0, v0")
        a("s_and_saveexec_b64 s[8:9], vcc")
        a("s_cbranch_execz K3_END")
        a("s_lshl_b32 s10, s10, 4")
        a("v_mov_b32 v1, s10")
        a("v_mov_b32 v2, 1")
        a("s_waitcnt lgkmcnt(0)")
        a("global_atomic_add v1, v2, s[4:5] sc1")
    ST.stamp(); ST.real()
    ST.flush(3, "K3_ST")
    a.label("K3_END")
    trace_end(a, "3")
    a("s_endpgm")
    a.label("K3_STAT")
    a("s_load_dwordx2 s[8:9], s[0:1], 120")
    a("s_load_dwordx2 s[60:61], s[0:1], 112")
    a("s_mov_b32 s10, s2")
    a("v_lshrrev_b32 v1, 6, v0")
    a("v_and_b32 v2, 63, v0")
    a("v_lshrrev_b32 v3, 4, v0")
    a("v_and_b32 v4, 15, v0")
    a("v_readfirstlane_b32 s3, v1")
    a(f"v_mul_u32_u24 v5, {14*RS}, v3")
    a("v_lshl_add_u32 v5, v4, 4, v5")
    a("s_lshl_b32 s36, s10, 8")
    a("s_waitcnt lgkmcnt(0)")
    srd(a, 24, 8, 448 * RS, WS_HT)
    srd(a, 64, 8, 2048 * 8, WS_ST)
    for i in range(14):
        a(f"buffer_load_dwordx4 v[{32+4*i}:{35+4*i}], v5, s[24:27], s36 offen")
        a(f"s_add_u32 s36, s36, {RS}")
    SB = 96
    for i in range(16): a(f"v_mov_b32 v{SB+i}, 0")
    for i in range(14):
        a(f"s_waitcnt vmcnt({13-i})")
        for k in range(4):
            a(f"v_lshlrev_b32 v{112+2*k}, 16, v{32+4*i+k}")
            a(f"v_and_b32 v{113+2*k}, 0xffff0000, v{32+4*i+k}")
        for e in range(8):
            a(f"v_add_f32 v{SB+e}, v{SB+e}, v{112+e}")
            a(f"v_fmac_f32 v{SB+8+e}, v{112+e}, v{112+e}")
    a("s_nop 1")
    for i in range(8): a(f"v_permlane32_swap_b32 v{SB+i}, v{SB+8+i}")
    a("s_nop 1")
    for i in range(8): a(f"v_add_f32 v{SB+i}, v{SB+i}, v{SB+8+i}")
    a("s_nop 1")
    for i in range(4): a(f"v_permlane16_swap_b32 v{SB+i}, v{SB+4+i}")
    a("s_nop 1")
    for i in range(4): a(f"v_add_f32 v{SB+i}, v{SB+i}, v{SB+4+i}")
    a("v_lshrrev_b32 v11, 4, v2")
    a("v_lshlrev_b32 v10, 5, v4")
    a("v_and_b32 v12, 1, v11")
    a("v_lshl_add_u32 v10, v12, 4, v10")
    a("v_lshrrev_b32 v11, 1, v11")
    a("v_lshl_add_u32 v10, v11, 9, v10")
    a("s_lshl_b32 s40, s3, 10")
    a("v_add_u32 v10, s40, v10")
    a(f"ds_write_b128 v10, v[{SB}:{SB+3}]")
    a("s_waitcnt lgkmcnt(0)")
    a("s_barrier")
    a("s_cmp_lt_u32 s3, 2")
    a("s_cbranch_scc0 K3_ST2")
    a("v_lshlrev_b32 v10, 2, v0")
    for w in range(8):
        a(f"ds_read_b32 v{32+2*w}, v10 offset:{1024*w}")
        a(f"ds_read_b32 v{33+2*w}, v10 offset:{1024*w+512}")
    a("s_waitcnt lgkmcnt(0)")
    for st in (8, 4, 2):
        for i in range(0, st, 2):
            a(f"v_pk_add_f32 v[{32+i}:{33+i}], v[{32+i}:{33+i}], v[{32+i+st}:{33+i+st}]")
    S, Q, M, R = 32, 33, 34, 35
    a(f"v_mul_f32 v{S}, 0x{f2u(1/448.0):08x}, v{S}")
    a(f"v_mul_f32 v{Q}, 0x{f2u(1/448.0):08x}, v{Q}")
    a(f"v_fma_f32 v{Q}, -v{S}, v{S}, v{Q}")
    a(f"v_max_f32 v{Q}, 0, v{Q}")
    a(f"v_cvt_pk_bf16_f32 v{Q}, v{Q}, v{S}")
    a(f"v_and_b32 v{M}, 0xffff0000, v{Q}")
    a(f"v_lshlrev_b32 v{Q}, 16, v{Q}")
    a(f"v_add_f32 v{Q}, 0x{f2u(1e-5):08x}, v{Q}")
    a(f"v_cvt_pk_bf16_f32 v{Q}, v{Q}, v{Q}")
    a(f"v_lshlrev_b32 v{Q}, 16, v{Q}")
    a(f"v_sqrt_f32 v{Q}, v{Q}")
    a("s_nop 0")
    a(f"v_cvt_pk_bf16_f32 v{Q}, v{Q}, v{Q}")
    a(f"v_lshlrev_b32 v{Q}, 16, v{Q}")
    a(f"v_rcp_f32 v{R}, v{Q}")
    a("s_nop 0")
    a(f"v_sub_f32 v{M}, 0, v{M}")
    a("v_lshlrev_b32 v10, 3, v0")
    a("s_lshl_b32 s49, s10, 10")
    a(f"buffer_store_dwordx2 v[{M}:{R}], v10, s[64:67], s49 offen sc1")
    a("s_waitcnt vmcnt(0)")
    a.label("K3_ST2")
    a("s_barrier")
    a("v_cmp_eq_u32 vcc, 0, v0")
    a("s_and_saveexec_b64 s[8:9], vcc")
    a("s_cbranch_execz K3_ST3")
    a("s_lshl_b32 s10, s10, 2")
    a("v_mov_b32 v1, s10")
    a("v_mov_b32 v2, 1")
    a("global_atomic_add v1, v2, s[60:61] sc1")
    a.label("K3_ST3")
    a("s_endpgm")
    if fused:
        import gen_k4
        gen_k4.gen_k4(a, fused=True)
    return descriptor("k3_kernel", 232)
```

```python
from gen_common import *
import math, struct, os
def f2u(x): return struct.unpack("<I", struct.pack("<f", x))[0]
LOG2E = 1.4426950408889634
K1_LDS = 66560 + 8768

def dpp_reduce(a, regs):
    steps = ["row_shr:1 row_mask:0xf bank_mask:0xf bound_ctrl:0", "row_shr:2 row_mask:0xf bank_mask:0xf bound_ctrl:0",
             "row_shr:4 row_mask:0xf bank_mask:0xf bound_ctrl:0", "row_shr:8 row_mask:0xf bank_mask:0xf bound_ctrl:0",
             "row_bcast:15 row_mask:0xa bank_mask:0xf", "row_bcast:31 row_mask:0xc bank_mask:0xf"]
    a.nop(2)
    for st in steps:
        for r in regs:
            a(f"v_add_f32_dpp v{r}, v{r}, v{r} {st}")
    a.nop(2)

def gen_k1(a):
    kernel_begin(a, "k1_kernel")
    trace_begin(a, "1")
    a("s_cmp_ge_u32 s2, 512")
    a("s_cbranch_scc1 K1_END")
    a("s_cmp_ge_u32 s2, 64")
    a("s_cbranch_scc1 K1_KGEN")
    a(f"s_setprio {int(os.environ.get('LNPRIO', 2))}")
    a("s_load_dwordx2 s[4:5], s[0:1], 0")
    a("s_load_dwordx2 s[6:7], s[0:1], 120")
    a("v_lshrrev_b32 v1, 6, v0")
    a("v_and_b32 v2, 63, v0")
    a("s_nop 0")
    a("v_readfirstlane_b32 s3, v1")
    a("s_lshl_b32 s40, s2, 2")
    a("s_nop 2")
    a("s_add_u32 s40, s40, s3")
    a("s_lshl_b32 s40, s40, 3")
    a("s_mul_i32 s41, s40, 896")
    a("v_cmp_gt_u32 vcc, 56, v2")
    a("v_lshlrev_b32 v3, 4, v2")
    a("v_mov_b32 v4, 0x40000000")
    a("v_cndmask_b32 v3, v4, v3, vcc")
    a("s_mov_b64 s[44:45], vcc")
    a("s_waitcnt lgkmcnt(0)")
    srd(a, 8, 4, 2048 * 896)
    srd(a, 12, 6, 448 * UR_STRIDE, WS_UR)
    srd(a, 16, 6, 448 * RS, WS_XT)
    for r in range(8):
        a(f"buffer_load_dwordx4 v[{8+4*r}:{11+4*r}], v3, s[8:11], s41 offen")
        if r < 7: a("s_add_u32 s41, s41, 896")
    a("v_mul_u32_u24 v5, 640, v2")
    a("v_mov_b32 v4, 71680")
    a("s_lshl_b32 s46, s3, 4")
    a("v_add_u32 v6, s46, v5")
    a("v_add_u32 v6, 35840, v6")
    a("s_sub_u32 s46, 48, s46")
    a("v_add_u32 v5, s46, v5")
    a("v_cndmask_b32 v5, v4, v5, vcc")
    a("v_cndmask_b32 v6, v4, v6, vcc")
    a("s_mov_b32 s48, 0x05040100")
    a("s_mov_b32 s49, 0x07060302")
    XF = 40
    for r in range(8):
        a(f"s_waitcnt vmcnt({7-r})")
        b = XF + 8 * r
        for k in range(4):
            a(f"v_lshlrev_b32 v{b+2*k}, 16, v{8+4*r+k}")
            a(f"v_and_b32 v{b+2*k+1}, 0xffff0000, v{8+4*r+k}")
        t = 104 + 8 * (r % 2)
        a(f"v_pk_add_f32 v[{t}:{t+1}], v[{b}:{b+1}], v[{b+2}:{b+3}]")
        a(f"v_pk_add_f32 v[{t+2}:{t+3}], v[{b+4}:{b+5}], v[{b+6}:{b+7}]")
        a(f"v_pk_mul_f32 v[{t+4}:{t+5}], v[{b}:{b+1}], v[{b}:{b+1}]")
        a(f"v_pk_mul_f32 v[{t+6}:{t+7}], v[{b+4}:{b+5}], v[{b+4}:{b+5}]")
        a(f"v_pk_add_f32 v[{t}:{t+1}], v[{t}:{t+1}], v[{t+2}:{t+3}]")
        a(f"v_pk_fma_f32 v[{t+4}:{t+5}], v[{b+2}:{b+3}], v[{b+2}:{b+3}], v[{t+4}:{t+5}]")
        a(f"v_pk_fma_f32 v[{t+6}:{t+7}], v[{b+6}:{b+7}], v[{b+6}:{b+7}], v[{t+6}:{t+7}]")
        a(f"v_add_f32 v{120+r}, v{t}, v{t+1}")
        a(f"v_pk_add_f32 v[{t+4}:{t+5}], v[{t+4}:{t+5}], v[{t+6}:{t+7}]")
        a(f"v_add_f32 v{128+r}, v{t+4}, v{t+5}")
    dpp_reduce(a, list(range(120, 136)))
    for r in range(16):
        a(f"v_readlane_b32 s{60+r}, v{120+r}, 63")
    a.nop(4)
    for r in range(8):
        a(f"v_writelane_b32 v117, s{60+r}, {r}")
        a(f"v_writelane_b32 v116, s{68+r}, {r}")
    a.nop(2)
    a(f"v_mul_f32 v117, 0x{f2u(1.0/448.0):08x}, v117")
    a(f"v_mul_f32 v116, 0x{f2u(1.0/448.0):08x}, v116")
    a("v_fma_f32 v116, -v117, v117, v116")
    a("v_max_f32 v116, 0, v116")
    a("v_cvt_pk_bf16_f32 v118, v116, v117")
    a("v_lshlrev_b32 v116, 16, v118")
    a("v_and_b32 v117, 0xffff0000, v118")
    a(f"v_add_f32 v116, 0x{f2u(1e-5):08x}, v116")
    a("v_cvt_pk_bf16_f32 v116, v116, v116")
    a("v_lshlrev_b32 v116, 16, v116")
    a("v_sqrt_f32 v116, v116")
    a("s_nop 0")
    a("v_cvt_pk_bf16_f32 v116, v116, v116")
    a("v_lshlrev_b32 v116, 16, v116")
    a("v_rcp_f32 v116, v116")
    a.nop(2)
    for r in range(8):
        a(f"v_readlane_b32 s{20+2*r}, v117, {r}")
        a(f"v_readlane_b32 s{60+2*r}, v116, {r}")
    a.nop(3)
    for half in range(2):
        rows = range(4 * half, 4 * half + 4)
        for k in range(4):
            for r in rows:
                p = XF + 8 * r + 2 * k
                a(f"v_pk_add_f32 v[{p}:{p+1}], v[{p}:{p+1}], s[{20+2*r}:{21+2*r}] op_sel_hi:[1,0] neg_lo:[0,1] neg_hi:[0,1]")
        for r in rows:
            for k in range(4):
                p = XF + 8 * r + 2 * k
                a(f"v_cvt_pk_bf16_f32 v{104+4*(r%4)+k}, v{p}, v{p+1}")
        for r in rows:
            for k in range(4):
                p = XF + 8 * r + 2 * k
                a(f"v_lshlrev_b32 v{p}, 16, v{104+4*(r%4)+k}")
                a(f"v_and_b32 v{p+1}, 0xffff0000, v{104+4*(r%4)+k}")
        for k in range(4):
            for r in rows:
                p = XF + 8 * r + 2 * k
                a(f"v_pk_mul_f32 v[{p}:{p+1}], v[{p}:{p+1}], s[{60+2*r}:{61+2*r}] op_sel_hi:[1,0]")
    for e in range(8):
        for p in range(4):
            a(f"v_cvt_pk_bf16_f32 v{136+4*e+p}, v{XF+8*(7-2*p)+e}, v{XF+8*(6-2*p)+e}")
        a(f"ds_write_b128 v5, v[{136+4*e}:{139+4*e}] offset:{80*e}")
    a("v_lshrrev_b32 v5, 2, v0")
    a("v_and_b32 v6, 3, v0")
    a("v_mul_u32_u24 v7, 80, v5")
    a("v_lshl_add_u32 v7, v6, 4, v7")
    a("v_add_u32 v4, 35840, v7")
    a(f"v_mul_u32_u24 v5, {RS}, v5")
    a("v_lshl_add_u32 v5, v6, 4, v5")
    a("s_lshl_b32 s46, s2, 6")
    a("s_sub_u32 s47, 4032, s46")
    a("s_waitcnt lgkmcnt(0)")
    a("s_barrier")
    for i in range(7):
        a(f"ds_read_b128 v[{8+4*i}:{11+4*i}], v7 offset:{5120*i}")
    for i in range(7):
        a(f"s_waitcnt lgkmcnt({6-i})")
        a(f"buffer_store_dwordx4 v[{8+4*i}:{11+4*i}], v5, s[12:15], s47 offen WT")
        if i < 6:
            a(f"s_add_u32 s47, s47, {64*RS}")
    trace_end(a, "1")
    a("s_endpgm")

    a.label("K1_KGEN")
    ST = Stamper(a, "1", 100); ST.real(); ST.stamp()
    a("s_load_dwordx4 s[4:7], s[0:1], 8")
    a("s_load_dwordx4 s[8:11], s[0:1], 24")
    a("s_load_dwordx4 s[12:15], s[0:1], 40")
    a("s_load_dwordx2 s[16:17], s[0:1], 56")
    a("s_load_dwordx2 s[18:19], s[0:1], 120")
    a("s_load_dwordx2 s[56:57], s[0:1], 0")
    a("s_sub_u32 s3, s2, 64")
    a("v_lshlrev_b32 v1, 1, v0")
    a("s_lshl_b32 s20, s3, 9")
    a("s_lshl_b32 s21, s3, 1")
    a("v_mov_b32 v9, 0")
    a("s_waitcnt lgkmcnt(0)")
    n = 448 * 256 * 2
    for i, p in enumerate([4, 6, 8, 10, 12, 14]):
        srd(a, 24 + 4 * i, p, n)
    srd(a, 48, 16, 896)
    srd(a, 52, 18, 448 * KP_STRIDE, WS_KP)
    for i in range(6):
        a(f"buffer_load_ushort v{2+i}, v1, s[{24+4*i}:{27+4*i}], s20 offen")
    a("buffer_load_ushort v8, v9, s[48:51], s21 offen")
    a("s_mul_i32 s58, s3, 9363")
    a("s_lshr_b32 s58, s58, 16")
    a("s_mul_i32 s59, s58, 7")
    a("s_sub_u32 s59, s3, s59")
    srd(a, 60, 56, 2048 * 896)
    srd(a, 64, 18, 448 * RS, WS_XT)
    a("v_lshrrev_b32 v116, 3, v0")
    a("v_and_b32 v117, 7, v0")
    a("v_mul_u32_u24 v118, 896, v116")
    a("v_lshl_add_u32 v118, v117, 4, v118")
    a("s_mul_i32 s68, s58, 28672")
    a("s_lshl_b32 s69, s59, 7")
    a("s_add_u32 s68, s68, s69")
    a("buffer_load_dwordx4 v[120:123], v118, s[60:63], s68 offen")
    a("v_mul_u32_u24 v118, 640, v117")
    a("v_lshl_add_u32 v118, v116, 1, v118")
    a("v_lshrrev_b32 v116, 2, v0")
    a("v_and_b32 v117, 3, v0")
    a("v_mul_u32_u24 v119, 80, v116")
    a("v_lshl_add_u32 v119, v117, 4, v119")
    a(f"v_mul_u32_u24 v116, {RS}, v116")
    a("v_lshl_add_u32 v116, v117, 4, v116")
    a(f"s_mul_i32 s68, s59, {64*RS}")
    a("s_lshl_b32 s69, s58, 6")
    a("s_add_u32 s68, s68, s69")
    a("v_lshlrev_b32 v1, 2, v0")
    T0 = 66560
    ZS = T0 + 4 * 2190
    a("v_lshlrev_b32 v50, 3, v0")
    a("v_subrev_u32 v50, 63, v50")
    a("v_and_b32 v51, 31, v0")
    a("v_lshlrev_b32 v51, 3, v51")
    a("v_add_u32 v51, 1985, v51")
    a(f"v_mov_b32 v52, {ZS}")
    a("v_lshrrev_b32 v53, 6, v0")
    a("s_nop 0")
    a("v_readfirstlane_b32 s22, v53")
    for ps, base in ((0, 50), (1, 51)):
        if ps == 1:
            a("s_cmp_eq_u32 s22, 0")
            a("s_cbranch_scc0 K1_NOP2")
        for k in range(4):
            o = 64 + 10 * ps + 2 * k
            a(f"v_add_u32 v53, {2*k}, v{base}")
            a(f"v_add_u32 v54, {2*k+1}, v{base}")
            a("v_cvt_f32_u32 v55, v53")
            a("v_cvt_f32_u32 v56, v54")
            a("v_cvt_pk_bf16_f32 v57, v55, v56")
            a("v_lshlrev_b32 v55, 16, v57")
            a("v_and_b32 v56, 0xffff0000, v57")
            a("v_cvt_u32_f32 v55, v55")
            a("v_cvt_u32_f32 v56, v56")
            a(f"v_lshlrev_b32 v55, 2, v55")
            a(f"v_lshlrev_b32 v56, 2, v56")
            a(f"v_add_u32 v55, {T0}, v55")
            a(f"v_add_u32 v56, {T0}, v56")
            a("v_cmp_lt_u32 vcc, 2047, v53")
            a("s_nop 1")
            a(f"v_cndmask_b32 v{o}, v55, v52, vcc")
            a("v_cmp_lt_u32 vcc, 2047, v54")
            a("s_nop 1")
            a(f"v_cndmask_b32 v{o+1}, v56, v52, vcc")
    a.label("K1_NOP2")
    a("v_mov_b32 v53, 0")
    a("ds_write_b32 v52, v53")
    ST.stamp()
    a("s_waitcnt vmcnt(0)")
    ST.stamp()
    for i in range(7):
        a(f"v_lshlrev_b32 v{2+i}, 16, v{2+i}")
    a(f"v_mul_f32 v8, 0x{f2u(LOG2E):08x}, v8")
    a("v_exp_f32 v8, v8")
    a("s_nop 0")
    a("v_cvt_pk_bf16_f32 v8, v8, v8")
    a("v_lshlrev_b32 v8, 16, v8")
    a("v_mul_f32 v10, v8, v2")
    a("v_mul_f32 v11, v8, v3")
    a("v_mul_f32 v4, v8, v4")
    a("v_mul_f32 v5, v8, v5")
    cmul(a, 30, 6, 4)
    def E(dst, p, conj=False):
        a(f"v_mul_f32 v46, 0x{f2u(p*LOG2E):08x}, v10")
        a(f"v_mul_f32 v47, 0x{f2u(p/(2*math.pi)):08x}, v11")
        a("v_exp_f32 v46, v46")
        a("v_fract_f32 v47, v47")
        a("v_cos_f32 v48, v47")
        a("v_sin_f32 v49, v47")
        a("s_nop 0")
        a(f"v_mul_f32 v{dst}, v46, v48")
        if conj:
            a(f"v_mul_f32 v{dst+1}, -v46, v49") if False else a(f"v_mul_f32_e64 v{dst+1}, -v46, v49")
        else:
            a(f"v_mul_f32 v{dst+1}, v46, v49")
    E(12, 1); E(26, 8, conj=True); E(28, 128)
    cmul(a, 14, 12, 12)
    cmul(a, 16, 14, 12)
    cmul(a, 18, 14, 14)
    cmul(a, 20, 18, 12)
    cmul(a, 22, 18, 14)
    cmul(a, 24, 18, 16)
    W = {1: 12, 2: 14, 3: 16, 4: 18, 5: 20, 6: 22, 7: 24}
    rot = [42, 43, 44, 45]
    cnt = [0]
    def put(src, addr):
        r = rot[cnt[0] % 4]; cnt[0] += 1
        a(f"v_cvt_pk_bf16_f32 v{r}, v{src}, v{src+1}")
        a(f"ds_write_b32 v1, v{r} offset:{addr}")
    Y0 = 48 * 1040
    a("v_mov_b32 v34, 1.0")
    a("v_mov_b32 v35, 0")
    put(34, Y0)
    put(26, Y0 + 1040)
    cur = 26
    for c in range(2, 16):
        nxt = 34 if cur != 34 else 36
        cmul(a, nxt, cur, 26)
        put(nxt, Y0 + 1040 * c)
        cur = nxt
    z = 30
    tmp = [38, 40]
    tc = 0
    for h in range(17):
        if h < 2: lst = [(8 * h + e, e) for e in range(8)]
        elif h < 4: lst = [(16 + 4 * (h - 2) + r, 2 * r) for r in range(4)]
        elif h < 8: lst = [(16 + 4 * (2 + e) + (h - 4), 4 * e) for e in range(2)]
        else: lst = [(32 + h - 8, 0)]
        for row, e in lst:
            if e == 0:
                put(z, row * 1040)
            else:
                t = tmp[tc % 2]; tc += 1
                cmul(a, t, z, W[e])
                put(t, row * 1040)
        if h < 16:
            nz = 32 if z == 30 else 30
            cmul(a, nz, z, 28)
            z = nz
    for k in range(4):
        a(f"ds_write_b16 v118, v{120+k} offset:{42640+160*k}")
        a(f"ds_write_b16_d16_hi v118, v{120+k} offset:{42640+160*k+80}")
    a("s_waitcnt lgkmcnt(0)")
    a("s_barrier")
    ST.stamp()
    a("ds_read_b128 v[120:123], v119 offset:42640")
    a("s_waitcnt lgkmcnt(0)")
    a("buffer_store_dwordx4 v[120:123], v116, s[64:67], s68 offen WT")
    a("v_lshrrev_b32 v50, 6, v0")
    a("s_nop 0")
    a("v_readfirstlane_b32 s22, v50")
    a("s_nop 3")
    a("s_cmp_ge_u32 s22, 3")
    a("s_cbranch_scc1 K1_KG_SKIP")
    a("v_and_b32 v51, 15, v0")
    a("v_bfe_u32 v52, v0, 4, 2")
    a("s_movk_i32 s23, 1040")
    a("v_mul_u32_u24 v53, 1040, v51")
    a("v_lshl_add_u32 v53, v52, 4, v53")
    a("s_mul_i32 s23, s22, 16640")
    a("v_add_u32 v54, s23, v53")
    a(f"v_add_u32 v55, {Y0}, v53")
    def rd(g):
        base = 96 + (g % 2) * 32
        for k in range(4):
            ks = 4 * g + k
            a(f"ds_read_b128 v[{base+8*k}:{base+8*k+3}], v54 offset:{64*ks}")
            a(f"ds_read_b128 v[{base+8*k+4}:{base+8*k+7}], v55 offset:{64*ks}")
    rd(0); rd(1)
    for g in range(4):
        a(f"s_waitcnt lgkmcnt({8 if g < 3 else 0})")
        base = 96 + (g % 2) * 32
        for k in range(4):
            c = "0" if (g == 0 and k == 0) else "v[56:59]"
            a(f"v_mfma_f32_16x16x32_bf16 v[56:59], v[{base+8*k}:{base+8*k+3}], v[{base+8*k+4}:{base+8*k+7}], {c}")
        if g < 2:
            rd(g + 2)
    a("v_cmp_gt_u32 vcc, 2, v52")
    a("s_cmp_eq_u32 s22, 0")
    a("s_cbranch_scc0 K1_T1")
    a("v_lshrrev_b32 v60, 1, v52")
    a("v_lshlrev_b32 v60, 7, v60")
    a("v_and_b32 v61, 1, v52")
    a("v_lshl_add_u32 v60, v61, 2, v60")
    a("v_mov_b32 v61, 1")
    a("s_branch K1_TD")
    a.label("K1_T1")
    a("s_cmp_eq_u32 s22, 1")
    a("s_cbranch_scc0 K1_T2")
    a("v_lshlrev_b32 v60, 7, v52")
    a("v_add_u32 v60, 256, v60")
    a("v_lshlrev_b32 v61, 2, v52")
    a("v_add_u32 v61, 504, v61")
    a("v_cndmask_b32 v60, v61, v60, vcc")
    a("v_mov_b32 v61, 128")
    a("v_cndmask_b32 v61, v61, 2, vcc") if False else None
    a("v_mov_b32 v62, 2")
    a("v_cndmask_b32 v61, v61, v62, vcc")
    a("s_branch K1_TD")
    a.label("K1_T2")
    a("v_lshlrev_b32 v60, 9, v52")
    a("v_add_u32 v60, 1024, v60")
    a("v_lshlrev_b32 v61, 3, v52")
    a("v_add_u32 v61, 2032, v61")
    a("v_cndmask_b32 v60, v61, v60, vcc")
    a("v_mov_b32 v61, 1")
    a("v_mov_b32 v62, 128")
    a("v_cndmask_b32 v61, v61, v62, vcc")
    a.label("K1_TD")
    a("v_lshl_add_u32 v60, v51, 3, v60")
    a("v_lshlrev_b32 v60, 2, v60")
    a(f"v_add_u32 v60, {T0}, v60")
    a("v_lshlrev_b32 v61, 2, v61")
    a.nop(8)
    for r in range(4):
        a(f"ds_write_b32 v60, v{56+r}")
        if r < 3: a("v_add_u32 v60, v60, v61")
    a.label("K1_KG_SKIP")
    a("s_waitcnt lgkmcnt(0)")
    a("s_barrier")
    ST.stamp()
    a(f"s_mul_i32 s23, s3, {KP_STRIDE}")
    def expand(ib, voff):
        for e in range(8):
            a(f"ds_read_b32 v{96+e}, v{ib+e}")
        a("s_waitcnt lgkmcnt(0)")
        for k in range(4):
            a(f"v_cvt_pk_bf16_f32 v{108+k}, v{96+2*k}, v{97+2*k}")
        a(f"buffer_store_dwordx4 v[108:111], v{voff}, s[52:55], s23 offen WT")
    a("v_lshlrev_b32 v50, 4, v0")
    expand(64, 50)
    a("s_cmp_eq_u32 s22, 0")
    a("s_cbranch_scc0 K1_END")
    a("v_and_b32 v52, 31, v0")
    a("v_lshlrev_b32 v52, 4, v52")
    a("v_add_u32 v52, 4096, v52")
    a("s_nop 1")
    a("s_nop 1")
    expand(74, 52)
    ST.stamp(); ST.real()
    ST.flush(22, "K1_ST")
    a.label("K1_END")
    trace_end(a, "1")
    a("s_endpgm")
    return descriptor("k1_kernel", 200)
```

```python
from gen_common import *
import math, struct, os
def f2u(x): return struct.unpack("<I", struct.pack("<f", x))[0]
LOG2E = 1.4426950408889634
NST = 6
STG = 24576
PB = NST * STG
K3_LDS = PB + 8192

def gen_k3(a, fused=False):
    kernel_begin(a, "k3_kernel")
    trace_begin(a, "3")
    if fused:
        a("s_cmp_ge_u32 s2, 448")
        a("s_cbranch_scc1 K3_END")
        a("s_cmp_ge_u32 s2, 224")
        a("s_cbranch_scc1 K4_START")
    else:
        a("s_cmp_ge_u32 s2, 240")
        a("s_cbranch_scc1 K3_END")
        a("s_cmp_lt_u32 s2, 16")
        a("s_cbranch_scc1 K3_STAT")
        a("s_sub_u32 s2, s2, 16")
    ST = Stamper(a, "3"); ST.real(); ST.stamp()
    a("s_load_dwordx4 s[4:7], s[0:1], 80")
    a("s_load_dwordx2 s[8:9], s[0:1], 120")
    a("s_load_dwordx2 s[60:61], s[0:1], 112")
    a("v_lshrrev_b32 v1, 6, v0")
    a("v_and_b32 v2, 63, v0")
    a("s_and_b32 s10, s2, 7")
    a("s_lshr_b32 s11, s2, 3")
    a("v_readfirstlane_b32 s3, v1")
    a("s_mul_i32 s12, s11, 37")
    a("s_lshr_b32 s12, s12, 8")
    a("s_mul_i32 s13, s12, 7")
    a("s_sub_u32 s11, s11, s13")
    a("s_and_b32 s13, s10, 1")
    a("s_mul_i32 s13, s13, 7")
    a("s_add_u32 s11, s11, s13")
    a("s_lshr_b32 s10, s10, 1")
    a("s_lshl_b32 s10, s10, 2")
    a("s_add_u32 s10, s10, s12")
    a("s_and_b32 s14, s3, 3")
    a("s_lshr_b32 s15, s3, 2")
    a("v_lshrrev_b32 v3, 4, v2")
    a("v_bfe_u32 v4, v2, 2, 2")
    a("v_xor_b32 v4, v4, v3")
    a("v_and_b32 v5, 3, v2")
    a("v_lshl_add_u32 v4, v4, 2, v5")
    a("v_lshlrev_b32 v4, 4, v4")
    a("v_mul_u32_u24 v5, 3584, v3")
    a("v_add_u32 v5, v5, v4")
    a(f"v_mul_u32_u24 v6, {RS}, v3")
    a("v_add_u32 v6, v6, v4")
    a("s_lshl_b32 s36, s3, 2")
    a("s_mul_i32 s37, s36, 3584")
    a("s_lshl_b32 s38, s11, 8")
    a("s_add_u32 s37, s37, s38")
    a(f"s_mul_i32 s39, s36, {RS}")
    a("s_lshl_b32 s38, s10, 8")
    a("s_add_u32 s39, s39, s38")
    a(f"s_sub_u32 s39, s39, {32*RS}")
    a("s_lshl_b32 s40, s3, 10")
    a("v_lshrrev_b32 v7, 5, v2")
    a("v_lshlrev_b32 v8, 4, v7")
    a("s_lshl_b32 s41, s11, 9")
    a("s_lshl_b32 s42, s14, 7")
    a("s_add_u32 s41, s41, s42")
    a("s_add_u32 s42, s41, 7168")
    CS = 160
    def dma(c):
        st = (c % NST) * STG
        a(f"s_add_u32 m0, s40, {st}")
        a(f"s_add_u32 s39, s39, {32*RS}")
        a("buffer_load_dwordx4 v5, s[16:19], s37 offen lds")
        a("s_add_u32 m0, m0, 8192")
        a("s_nop 0")
        a("buffer_load_dwordx4 v5, s[20:23], s37 offen lds")
        a("s_add_u32 m0, m0, 8192")
        a(f"s_add_u32 s37, s37, {32*3584}")
        a("buffer_load_dwordx4 v6, s[24:27], s39 offen lds")
    a("v_lshrrev_b32 v9, 4, v2")
    a("v_bfe_u32 v10, v2, 2, 2")
    a("v_and_b32 v11, 3, v2")
    a("v_lshrrev_b32 v12, 1, v9")
    a("v_lshl_add_u32 v12, v12, 3, v10")
    a("v_lshlrev_b32 v12, 8, v12")
    a("v_and_b32 v9, 1, v9")
    a("v_lshl_add_u32 v12, v9, 5, v12")
    a("v_lshl_add_u32 v12, v11, 3, v12")
    AD = 16
    a("v_xor_b32 v13, s14, v10")
    a(f"v_lshl_add_u32 v{AD}, v13, 6, v12")
    a("s_and_b32 s44, s14, 1")
    a("s_lshl_b32 s45, s15, 1")
    a("s_add_u32 s46, s45, s44")
    a("s_xor_b32 s47, s46, 1")
    a("v_xor_b32 v13, s46, v10")
    a(f"v_lshl_add_u32 v{AD+1}, v13, 6, v12")
    a("v_xor_b32 v13, s47, v10")
    a(f"v_lshl_add_u32 v{AD+2}, v13, 6, v12")
    a(f"v_add_u32 v{AD+1}, 16384, v{AD+1}")
    a(f"v_add_u32 v{AD+2}, 16384, v{AD+2}")
    for s in (1, 2):
        for i in range(3):
            a(f"v_add_u32 v{AD+3*s+i}, {2*STG*s}, v{AD+i}")
    a("v_lshrrev_b32 v9, 4, v0")
    a("v_bfe_u32 v10, v0, 2, 2")
    a("v_and_b32 v11, 3, v9")
    a("v_xor_b32 v10, v10, v11")
    a("v_and_b32 v11, 3, v0")
    a("v_lshl_add_u32 v10, v10, 2, v11")
    a("v_lshlrev_b32 v10, 4, v10")
    a("v_lshl_add_u32 v10, v9, 8, v10")
    a("v_add_u32 v192, 16384, v10")
    a(f"v_add_u32 v193, {16384+2*STG}, v10")
    a(f"v_add_u32 v194, {16384+4*STG}, v10")
    SA = 196
    for i in range(16): a(f"v_mov_b32 v{SA+i}, 0")
    a("s_waitcnt lgkmcnt(0)")
    if os.environ.get("FINE"): ST.stamp()
    srd(a, 16, 4, 448 * 3584)
    srd(a, 20, 6, 448 * 3584)
    srd(a, 24, 8, 448 * RS, WS_HT)
    srd(a, 28, 8, 3584 * 4, WS_CS)
    srd(a, 32, 8, 224 * AC, WS_ACT)
    srd(a, 64, 8, 2048 * 8, WS_ST)
    dma(0); dma(1)
    if os.environ.get("FINE"): ST.stamp()
    ACC = 32
    FR = 96
    LG = Lgkm(a)
    def rd_piece(c, ks, p, i):
        st = c % NST
        base = AD + 3 * (st // 2)
        off = (st % 2) * STG + ks * 16 * 256
        f = FR + 16 * p
        if i == 4:
            a(f"ds_read_b128 v[{212+4*(c%2)}:{215+4*(c%2)}], v{192 + st // 2} offset:{(st % 2) * STG}")
            LG.issue(("S", c)); return
        ar, o2 = ((base, 0), (base, 8192), (base + 1, 0), (base + 2, 0))[i]
        a(f"ds_read_b64_tr_b16 v[{f+4*i}:{f+4*i+1}], v{ar} offset:{off+o2}")
        a(f"ds_read_b64_tr_b16 v[{f+4*i+2}:{f+4*i+3}], v{ar} offset:{off+o2+1024}")
        LG.issue((c, ks, i, 0)); LG.issue((c, ks, i, 1))
    def mm(c, ks, first, stat, nxt):
        p = ks
        f = FR + 16 * p
        n = 0
        for s in range(2):
            for g in range(2):
                need = [(c, ks, g, 0), (c, ks, g, 1), (c, ks, 2 + s, 0), (c, ks, 2 + s, 1)]
                if stat is not None: need.append(("S", stat[2]))
                LG.need(need)
                d = ACC + 32 * s + 16 * g
                cc = "0" if first else f"v[{d}:{d+15}]"
                a(f"v_mfma_f32_32x32x16_bf16 v[{d}:{d+15}], v[{f+4*g}:{f+4*g+3}], v[{f+8+4*s}:{f+8+4*s+3}], {cc}")
                if nxt is not None:
                    for i in nxt[3][n]: rd_piece(nxt[0], nxt[1], nxt[2], i)
                if stat is not None:
                    raw, els, _ = stat
                    for e in els[n]:
                        t = 220 + (e % 4)
                        k = e // 2
                        if e % 2 == 0: a(f"v_lshlrev_b32 v{t}, 16, v{raw+k}")
                        else: a(f"v_and_b32 v{t}, 0xffff0000, v{raw+k}")
                        a(f"v_add_f32 v{SA+e}, v{SA+e}, v{t}")
                        a(f"v_fmac_f32 v{SA+8+e}, v{t}, v{t}")
                n += 1
    NC = 14
    def dma_state_save(): return None
    a("s_cmp_ge_u32 s3, 4")
    a("s_cselect_b64 vcc, -1, 0")
    if os.environ.get("PRIO3"):
        a("s_cbranch_scc0 K3_NP")
        a("s_setprio 1")
        a.label("K3_NP")
    def cs_loads():
        a("v_readfirstlane_b32 s49, v11")
        a("s_nop 3")
        a("s_cmp_lg_u32 s49, 0")
        a("s_cbranch_scc1 K3_PD")
        a.label("K3_POLL")
        a("s_sleep 2")
        a("global_load_dword v11, v10, s[60:61] sc1")
        a("s_waitcnt vmcnt(0)")
        a("v_readfirstlane_b32 s49, v11")
        a("s_nop 3")
        a("s_cmp_lg_u32 s49, 0")
        a("s_cbranch_scc0 K3_POLL")
        a.label("K3_PD")
        a("v_and_b32 v15, 31, v2")
        a("v_lshlrev_b32 v12, 3, v15")
        a("s_lshl_b32 s49, s10, 10")
        a("s_lshl_b32 s62, s46, 8")
        a("s_add_u32 s62, s62, s49")
        a("buffer_load_dwordx2 v[116:117], v12, s[64:67], s62 offen sc1") if False else a("buffer_load_dwordx2 v[200:201], v12, s[64:67], s62 offen sc1")
        a("s_lshl_b32 s62, s47, 8")
        a("s_add_u32 s62, s62, s49")
        a("buffer_load_dwordx2 v[202:203], v12, s[64:67], s62 offen sc1")
        for q in range(4):
            a(f"buffer_load_dwordx4 v[{CS+4*q}:{CS+4*q+3}], v8, s[28:31], s41 offen offset:{32*q}")
            a(f"buffer_load_dwordx4 v[{CS+16+4*q}:{CS+16+4*q+3}], v8, s[28:31], s42 offen offset:{32*q}")
    if os.environ.get("DEEP3"):
        sched = {c: ([c + 5] if c + 5 < NC else []) for c in range(NC)}
        issued = [0, 1, 2, 3, 4]
        for k in (2, 3, 4): dma(k)
        a("s_waitcnt vmcnt(12)")
    else:
        sched = {0: [2, 3], 1: [4, 5], 2: [6, 7]}
        for c in range(3, NC): sched[c] = [c + 5] if c + 5 < NC else []
        issued = [0, 1]
        a("s_waitcnt vmcnt(3)")
    a("s_barrier")
    ST.stamp()
    for i in (0, 2, 1, 3): rd_piece(0, 0, 0, i)
    def prereduce():
        a("s_nop 1")
        for i in range(8): a(f"v_permlane32_swap_b32 v{SA+i}, v{SA+8+i}")
        a("s_nop 1")
        for i in range(8): a(f"v_add_f32 v{SA+i}, v{SA+i}, v{SA+8+i}")
        a("s_nop 1")
        for i in range(4): a(f"v_permlane16_swap_b32 v{SA+i}, v{SA+4+i}")
        a("s_nop 1")
        for i in range(4): a(f"v_add_f32 v{SA+i}, v{SA+i}, v{SA+4+i}")
        a("v_and_b32 v10, 15, v2")
        a("v_lshrrev_b32 v11, 4, v2")
        a("v_lshlrev_b32 v10, 5, v10")
        a("v_and_b32 v12, 1, v11")
        a("v_lshl_add_u32 v10, v12, 4, v10")
        a("v_lshrrev_b32 v11, 1, v11")
        a("v_lshl_add_u32 v10, v11, 9, v10")
        a(f"s_add_u32 s49, s40, {PB}")
        a("v_add_u32 v10, s49, v10")
        a(f"ds_write_b128 v10, v[{SA}:{SA+3}]")
        a("v_and_b32 v15, 31, v2")
        a("s_lshl_b32 s49, s46, 7")
        a(f"s_add_u32 s49, s49, {PB}")
        a("v_lshlrev_b32 v28, 2, v15")
        a("v_add_u32 v28, s49, v28")
        a("s_lshl_b32 s49, s47, 7")
        a(f"s_add_u32 s49, s49, {PB}")
        a("v_lshlrev_b32 v29, 2, v15")
        a("v_add_u32 v29, s49, v29")
    if os.environ.get("TWICE"):
        a("s_mov_b32 s90, 2")
        a.label("K3_AGAIN")
    for c in range(NC):
        raw = 212 + 4 * (c % 2)
        if c + 1 < NC:
            nw = 3 * (len(issued) - 1 - issued.index(c + 1))
            if c in (10, 11): nw += 1
            a(f"s_cbranch_vccz K3_BB{c}")
            a(f"s_waitcnt vmcnt({nw})")
            a("s_barrier")
            a.label(f"K3_BB{c}")
            mm(c, 0, c == 0, None, (c, 1, 1, [[0], [2], [1], [3]]))
            a(f"s_cbranch_vccnz K3_BA{c}")
            a(f"s_waitcnt vmcnt({nw})")
            a("s_barrier")
            a.label(f"K3_BA{c}")
            for k in sched[c]:
                dma(k); issued.append(k)
            if c == 9:
                a("s_lshl_b32 s49, s10, 2")
                a("v_mov_b32 v10, s49")
                a("global_load_dword v11, v10, s[60:61] sc1")
            if c + 1 == NC - 1: cs_loads()
            mm(c, 1, False, None, (c + 1, 0, 0, [[0], [2], [1], [3]]))
        else:
            mm(c, 0, False, None, (c, 1, 1, [[0], [2], [1], [3]]))
            mm(c, 1, False, None, None)
        if c in (0, 6): ST.stamp()
    ST.stamp()
    if os.environ.get("TWICE"):
        a("s_sub_u32 s90, s90, 1")
        a("s_cmp_lg_u32 s90, 0")
        a("s_cbranch_scc1 K3_AGAIN")
    a("s_waitcnt vmcnt(0)")
    for s_ in range(2):
        a(f"v_mov_b32 v{116+2*s_}, v{200+2*s_}")
        a(f"v_mov_b32 v{117+2*s_}, v{201+2*s_}")
    ST.stamp()
    c0 = -2.0 * math.sqrt(2 / math.pi) * LOG2E
    c1 = c0 * 0.044715
    a(f"s_mov_b32 s50, 0x{f2u(c0):08x}"); a(f"s_mov_b32 s51, 0x{f2u(c0):08x}")
    a(f"s_mov_b32 s52, 0x{f2u(c1):08x}"); a(f"s_mov_b32 s53, 0x{f2u(c1):08x}")
    a("s_mov_b32 s54, 1.0"); a("s_mov_b32 s55, 1.0")
    a("s_lshl_b32 s56, s11, 4")
    a("s_lshl_b32 s57, s14, 2")
    a("s_add_u32 s56, s56, s57")
    a(f"s_mul_i32 s56, s56, {AC}")
    a("s_lshl_b32 s57, s10, 11")
    a("s_add_u32 s56, s56, s57")
    a("v_lshlrev_b32 v28, 4, v15")
    a(f"v_mul_u32_u24 v29, {AC}, v7")
    a("v_add_u32 v28, v28, v29")
    a("s_waitcnt vmcnt(0)")
    T = 120
    for s in range(2):
        M, R = 116 + 2 * s, 117 + 2 * s
        a(f"s_lshl_b32 s58, s{46+s}, 9")
        a("s_add_u32 s58, s58, s56")
        for q in range(4):
            o = 144 + 2 * q + 8 * s
            for h in range(2):
                g = ACC + 32 * s + 4 * q + 2 * h
                u = g + 16
                cg = CS + 4 * q + 2 * h; cu = cg + 16
                t = T + 8 * h
                a(f"v_pk_fma_f32 v[{g}:{g+1}], v[{cg}:{cg+1}], v[{M}:{M+1}], v[{g}:{g+1}] op_sel_hi:[1,0,1]")
                a(f"v_pk_fma_f32 v[{u}:{u+1}], v[{cu}:{cu+1}], v[{M}:{M+1}], v[{u}:{u+1}] op_sel_hi:[1,0,1]")
                a(f"v_pk_mul_f32 v[{g}:{g+1}], v[{g}:{g+1}], v[{M}:{M+1}] op_sel:[0,1] op_sel_hi:[1,1]")
                a(f"v_pk_mul_f32 v[{u}:{u+1}], v[{u}:{u+1}], v[{M}:{M+1}] op_sel:[0,1] op_sel_hi:[1,1]")
                a(f"v_pk_mul_f32 v[{t}:{t+1}], v[{g}:{g+1}], v[{g}:{g+1}]")
                a(f"v_pk_fma_f32 v[{t}:{t+1}], v[{t}:{t+1}], s[52:53], v[{t+2}:{t+3}]") if False else None
                a(f"v_pk_mul_f32 v[{t}:{t+1}], v[{t}:{t+1}], s[52:53]")
                a(f"v_pk_add_f32 v[{t}:{t+1}], v[{t}:{t+1}], s[50:51]")
                a(f"v_pk_mul_f32 v[{t}:{t+1}], v[{t}:{t+1}], v[{g}:{g+1}]")
                a(f"v_exp_f32 v{t}, v{t}")
                a(f"v_exp_f32 v{t+1}, v{t+1}")
                a(f"v_pk_mul_f32 v[{u}:{u+1}], v[{u}:{u+1}], v[{g}:{g+1}]")
                a(f"v_pk_add_f32 v[{t}:{t+1}], v[{t}:{t+1}], s[54:55]")
                a(f"v_rcp_f32 v{t}, v{t}")
                a(f"v_rcp_f32 v{t+1}, v{t+1}")
                a("s_nop 0")
                a(f"v_pk_mul_f32 v[{u}:{u+1}], v[{u}:{u+1}], v[{t}:{t+1}]")
                a(f"v_cvt_pk_bf16_f32 v{o+h}, v{u}, v{u+1}")
            if q % 2 == 1:
                qp = q // 2
                o = 144 + 4 * qp + 8 * s
                a("s_nop 1")
                a(f"v_permlane32_swap_b32 v{o}, v{o+2}")
                a(f"v_permlane32_swap_b32 v{o+1}, v{o+3}")
                a(f"s_add_u32 s59, s58, {qp*2*AC}")
                a("s_nop 0")
                a(f"buffer_store_dwordx4 v[{o}:{o+3}], v28, s[32:35], s59 offen WT")
    if fused:
        a("s_load_dwordx2 s[4:5], s[0:1], 112")
        a("s_waitcnt vmcnt(0)")
        a("s_barrier")
        a("v_cmp_eq_u32 vcc, 0, v0")
        a("s_and_saveexec_b64 s[8:9], vcc")
        a("s_cbranch_execz K3_END")
        a("s_lshl_b32 s10, s10, 4")
        a("v_mov_b32 v1, s10")
        a("v_mov_b32 v2, 1")
        a("s_waitcnt lgkmcnt(0)")
        a("global_atomic_add v1, v2, s[4:5] sc1")
    ST.stamp(); ST.real()
    ST.flush(3, "K3_ST")
    a.label("K3_END")
    trace_end(a, "3")
    a("s_endpgm")
    a.label("K3_STAT")
    a("s_load_dwordx2 s[8:9], s[0:1], 120")
    a("s_load_dwordx2 s[60:61], s[0:1], 112")
    a("s_mov_b32 s10, s2")
    a("v_lshrrev_b32 v1, 6, v0")
    a("v_and_b32 v2, 63, v0")
    a("v_lshrrev_b32 v3, 4, v0")
    a("v_and_b32 v4, 15, v0")
    a("v_readfirstlane_b32 s3, v1")
    a(f"v_mul_u32_u24 v5, {14*RS}, v3")
    a("v_lshl_add_u32 v5, v4, 4, v5")
    a("s_lshl_b32 s36, s10, 8")
    a("s_waitcnt lgkmcnt(0)")
    srd(a, 24, 8, 448 * RS, WS_HT)
    srd(a, 64, 8, 2048 * 8, WS_ST)
    for i in range(14):
        a(f"buffer_load_dwordx4 v[{32+4*i}:{35+4*i}], v5, s[24:27], s36 offen")
        a(f"s_add_u32 s36, s36, {RS}")
    SB = 96
    for i in range(16): a(f"v_mov_b32 v{SB+i}, 0")
    for i in range(14):
        a(f"s_waitcnt vmcnt({13-i})")
        for k in range(4):
            a(f"v_lshlrev_b32 v{112+2*k}, 16, v{32+4*i+k}")
            a(f"v_and_b32 v{113+2*k}, 0xffff0000, v{32+4*i+k}")
        for e in range(8):
            a(f"v_add_f32 v{SB+e}, v{SB+e}, v{112+e}")
            a(f"v_fmac_f32 v{SB+8+e}, v{112+e}, v{112+e}")
    a("s_nop 1")
    for i in range(8): a(f"v_permlane32_swap_b32 v{SB+i}, v{SB+8+i}")
    a("s_nop 1")
    for i in range(8): a(f"v_add_f32 v{SB+i}, v{SB+i}, v{SB+8+i}")
    a("s_nop 1")
    for i in range(4): a(f"v_permlane16_swap_b32 v{SB+i}, v{SB+4+i}")
    a("s_nop 1")
    for i in range(4): a(f"v_add_f32 v{SB+i}, v{SB+i}, v{SB+4+i}")
    a("v_lshrrev_b32 v11, 4, v2")
    a("v_lshlrev_b32 v10, 5, v4")
    a("v_and_b32 v12, 1, v11")
    a("v_lshl_add_u32 v10, v12, 4, v10")
    a("v_lshrrev_b32 v11, 1, v11")
    a("v_lshl_add_u32 v10, v11, 9, v10")
    a("s_lshl_b32 s40, s3, 10")
    a("v_add_u32 v10, s40, v10")
    a(f"ds_write_b128 v10, v[{SB}:{SB+3}]")
    a("s_waitcnt lgkmcnt(0)")
    a("s_barrier")
    a("s_cmp_lt_u32 s3, 2")
    a("s_cbranch_scc0 K3_ST2")
    a("v_lshlrev_b32 v10, 2, v0")
    for w in range(8):
        a(f"ds_read_b32 v{32+2*w}, v10 offset:{1024*w}")
        a(f"ds_read_b32 v{33+2*w}, v10 offset:{1024*w+512}")
    a("s_waitcnt lgkmcnt(0)")
    for st in (8, 4, 2):
        for i in range(0, st, 2):
            a(f"v_pk_add_f32 v[{32+i}:{33+i}], v[{32+i}:{33+i}], v[{32+i+st}:{33+i+st}]")
    S, Q, M, R = 32, 33, 34, 35
    a(f"v_mul_f32 v{S}, 0x{f2u(1/448.0):08x}, v{S}")
    a(f"v_mul_f32 v{Q}, 0x{f2u(1/448.0):08x}, v{Q}")
    a(f"v_fma_f32 v{Q}, -v{S}, v{S}, v{Q}")
    a(f"v_max_f32 v{Q}, 0, v{Q}")
    a(f"v_cvt_pk_bf16_f32 v{Q}, v{Q}, v{S}")
    a(f"v_and_b32 v{M}, 0xffff0000, v{Q}")
    a(f"v_lshlrev_b32 v{Q}, 16, v{Q}")
    a(f"v_add_f32 v{Q}, 0x{f2u(1e-5):08x}, v{Q}")
    a(f"v_cvt_pk_bf16_f32 v{Q}, v{Q}, v{Q}")
    a(f"v_lshlrev_b32 v{Q}, 16, v{Q}")
    a(f"v_sqrt_f32 v{Q}, v{Q}")
    a("s_nop 0")
    a(f"v_cvt_pk_bf16_f32 v{Q}, v{Q}, v{Q}")
    a(f"v_lshlrev_b32 v{Q}, 16, v{Q}")
    a(f"v_rcp_f32 v{R}, v{Q}")
    a("s_nop 0")
    a(f"v_sub_f32 v{M}, 0, v{M}")
    a("v_lshlrev_b32 v10, 3, v0")
    a("s_lshl_b32 s49, s10, 10")
    a(f"buffer_store_dwordx2 v[{M}:{R}], v10, s[64:67], s49 offen sc1")
    a("s_waitcnt vmcnt(0)")
    a.label("K3_ST2")
    a("s_barrier")
    a("v_cmp_eq_u32 vcc, 0, v0")
    a("s_and_saveexec_b64 s[8:9], vcc")
    a("s_cbranch_execz K3_ST3")
    a("s_lshl_b32 s10, s10, 2")
    a("v_mov_b32 v1, s10")
    a("v_mov_b32 v2, 1")
    a("global_atomic_add v1, v2, s[60:61] sc1")
    a.label("K3_ST3")
    a("s_endpgm")
    if fused:
        import gen_k4
        gen_k4.gen_k4(a, fused=True)
    return descriptor("k3_kernel", 232)
```
